```python
import torch

def _softmax(x, axis=-1):
    return torch.softmax(x, dim=axis)
def _gelu(x):
    return torch.nn.functional.gelu(x, approximate="tanh")
def _silu(x):
    return torch.nn.functional.silu(x)
def _sigmoid(x):
    return torch.sigmoid(x)
def _layernorm(x, axis=-1, eps=1e-5):
    m = x.mean(dim=axis, keepdim=True)
    v = x.var(dim=axis, keepdim=True, unbiased=False)
    return (x - m) / torch.sqrt(v + eps)
def _scatter_add(tgt, idx, src, axis=0):
    return tgt.clone().index_add_(axis, idx, src)
def _segment_sum(src, seg, n):
    out = torch.zeros((n,) + src.shape[1:], dtype=src.dtype)
    return out.index_add_(0, seg, src)
def _pad(x, pw):
    flat = tuple(v for pair in reversed(pw) for v in pair)
    return torch.nn.functional.pad(x, flat)

kernel_name = 'gated_mix__ssm_conv_s4__linear_attn_block__prompt'

def setup_inputs():

    _w = (lambda a: (lambda t: t.to(torch.bfloat16) if t.is_floating_point() else t)(torch.as_tensor(a)))
    def _A_setup():
        B, L, D, N = 1, 2048, 640, 128
        A_re = -(lambda _x: torch.exp(torch.as_tensor(_x)))((lambda *s: torch.randn(*s, dtype=torch.bfloat16) * 3.2)(D, N))
        A_im = torch.pi * (lambda *s: torch.randn(*s, dtype=torch.bfloat16) * 0.05)(D, N)
        B_re = (lambda *s: torch.randn(*s, dtype=torch.bfloat16) * 0.2)(D, N)
        B_im = (lambda *s: torch.randn(*s, dtype=torch.bfloat16) * 0.2)(D, N)
        C_re = (lambda *s: torch.randn(*s, dtype=torch.bfloat16) * 0.2)(D, N)
        C_im = (lambda *s: torch.randn(*s, dtype=torch.bfloat16) * 0.2)(D, N)
        log_dt = (lambda *s: torch.randn(*s, dtype=torch.bfloat16) * 0.05)(D) * 0.5 - 4.0
        Dskip = (lambda *s: torch.randn(*s, dtype=torch.bfloat16) * 0.05)(D)
        return {
            "u": _w((lambda *s: torch.randn(*s, dtype=torch.bfloat16) * 0.05)(B, L, D)),
            "A_re": _w(A_re),
            "A_im": _w(A_im),
            "B_re": _w(B_re),
            "B_im": _w(B_im),
            "C_re": _w(C_re),
            "C_im": _w(C_im),
            "log_dt": _w(log_dt),
            "Dskip": _w(Dskip),
        }
    _A_in = _A_setup()

    def _B_setup():
        B, S, D = 1, 2048, 640
        return {
            "x": _w((lambda *s: torch.randn(*s, dtype=torch.bfloat16) * 0.05)(B, S, D)),
            "wqkv": _w((lambda *s: torch.randn(*s, dtype=torch.bfloat16) * 0.8)(D, 3 * D)),
            "wo": _w((lambda *s: torch.randn(*s, dtype=torch.bfloat16) * 0.05)(D, D)),
        }
    _B_in = _B_setup()

    return {
        "A_u": _A_in["u"],
        "A_A_re": _A_in["A_re"],
        "A_A_im": _A_in["A_im"],
        "A_B_re": _A_in["B_re"],
        "A_B_im": _A_in["B_im"],
        "A_C_re": _A_in["C_re"],
        "A_C_im": _A_in["C_im"],
        "A_log_dt": _A_in["log_dt"],
        "A_Dskip": _A_in["Dskip"],
        "B_x": _B_in["x"],
        "B_wqkv": _B_in["wqkv"],
        "B_wo": _B_in["wo"],
        "gate_w": _w((lambda *s: torch.randn(*s, dtype=torch.bfloat16) * 0.05)(640) * 16.0),
    }

def reference(A_u, A_A_re, A_A_im, A_B_re, A_B_im, A_C_re, A_C_im, A_log_dt, A_Dskip, B_x, B_wqkv, B_wo, gate_w):
    def _A_ref(u, A_re, A_im, B_re, B_im, C_re, C_im, log_dt, Dskip):
        Bsz, L, D = u.shape
        dt = torch.exp(log_dt)[:, None]
        A = A_re + 1j * A_im
        Bc = B_re + 1j * B_im
        Cc = C_re + 1j * C_im
        logdA = dt * A
        dB = dt * Bc
        l = (lambda x, dt: x.to(dt))(torch.arange(L), A_re.dtype)
        P = torch.exp(logdA[:, :, None] * l[None, None, :])
        K = torch.einsum("dn,dnl,dn->dl", Cc, P, dB).real
        L2 = 2 * L
        Kp = _pad(K, ((0, 0), (0, L)))
        up = (lambda x, *d: x.permute(*d))(u, 0, 2, 1)
        up = _pad(up, ((0, 0), (0, 0), (0, L)))
        Kf = (lambda x, axes=(-2,-1): torch.fft.rfft2(x.float(), dim=axes))(Kp[:, None, :], axes=(-2, -1))
        Uf = (lambda x, axes=(-2,-1): torch.fft.rfft2(x.float(), dim=axes))(up[:, :, None, :], axes=(-2, -1))
        Yf = Uf * Kf[None, :, :, :]
        y = (lambda x, s, axes=(-2,-1): torch.fft.irfft2(x, s=s, dim=axes).to(torch.bfloat16))(Yf, (1, L2), axes=(-2, -1))[:, :, 0, :L]
        y = (lambda x, *d: x.permute(*d))(y, 0, 2, 1) + u * Dskip[None, None, :]
        return y

    def _B_ref(x, wqkv, wo):
        B, S, D = x.shape
        H = 32; Dh = D // H
        qkv = (lambda x, *d: x.permute(*d))((x @ wqkv).reshape(B, S, 3, H, Dh), 2, 0, 3, 1, 4)
        q, k, v = qkv[0], qkv[1], qkv[2]
        phi = lambda t: torch.where(t > 0, t + 1, torch.exp(t)) + 1e-6
        pq, pk = phi(q), phi(k)
        kv = torch.einsum("bhsd,bhse->bhde", pk, v)
        z = torch.einsum("bhsd->bhd", pk)
        num = torch.einsum("bhqd,bhde->bhqe", pq, kv)
        den = torch.einsum("bhqd,bhd->bhq", pq, z)[..., None] + 1e-6
        o = num / den
        return (lambda x, *d: x.permute(*d))(o, 0, 2, 1, 3).reshape(B, S, D) @ wo

    x = A_u
    g = _sigmoid((x * gate_w).sum(-1, keepdims=True))
    a = _A_ref(x, A_A_re, A_A_im, A_B_re, A_B_im, A_C_re, A_C_im, A_log_dt, A_Dskip)
    b = _B_ref(x, B_wqkv, B_wo)
    return g * a + (1 - g) * b
```

```python
class Asm:
    def __init__(self):
        self.lines = []
    def __call__(self, s):
        self.lines.append("    " + s)
    def label(self, s):
        self.lines.append(s + ":")
    def raw(self, s):
        self.lines.append(s)
    def comment(self, s):
        self.lines.append("    ; " + s)
    def text(self):
        return "\n".join(self.lines) + "\n"

class RegAlloc:
    def __init__(self, start=0, limit=256, prefix="v"):
        self.next = start; self.limit = limit; self.prefix = prefix; self.hi = start
    def alloc(self, n=1, align=1):
        s = (self.next + align - 1) // align * align
        self.next = s + n
        assert self.next <= self.limit, "out of regs %d" % self.next
        self.hi = max(self.hi, self.next)
        return s
    def mark(self): return self.next
    def reset(self, m): self.next = m

def v(i, n=1):
    return "v%d" % i if n == 1 else "v[%d:%d]" % (i, i + n - 1)
def a(i, n=1):
    return "a%d" % i if n == 1 else "a[%d:%d]" % (i, i + n - 1)
def s(i, n=1):
    return "s%d" % i if n == 1 else "s[%d:%d]" % (i, i + n - 1)
import struct
def f32bits(x):
    return "0x%08x" % struct.unpack("<I", struct.pack("<f", x))[0]
```

```python
from asmlib import *
from layout import *
import math

MS = list(range(16)) + list(range(16, 32, 2)) + list(range(32, 64, 4)) + list(range(64, 128, 8)) + [128]
IDX = {m: i for i, m in enumerate(MS)}
U_SZ = 4608
SCR0 = 2 * U_SZ
SCR_SZ = 10496
R1_OFF = 4160 + 64
R1_OFF = 4160
KC_OFF = 8448

def gen_conv(A):
    sX, sY, sCG, sWV, sCH, sHW, sD = 22, 23, 24, 25, 26, 27, 28
    sT0, sT1, sT2, sT3 = 30, 31, 32, 33
    sM0, sM1 = 34, 36
    sScr, sScrC, sScrO, sUb, sCnt, sDsk, sMask = 38, 39, 40, 41, 42, 43, 44
    R = RegAlloc(1, 168)
    vL, vI, vG = R.alloc(), R.alloc(), R.alloc()
    vT = R.alloc(8, 2)
    acc = R.alloc(32, 4)
    vU = R.alloc(8, 4)
    mark = R.mark()
    vPar = R.alloc(12, 2)
    vC1, vC2, vDt = R.alloc(), R.alloc(), R.alloc()
    vWA = R.alloc(8)
    vRA = R.alloc(8)
    vP = R.alloc(16, 2)
    vTB = R.alloc(40, 4)
    vTT = R.alloc(16, 2)
    kg_hi = R.mark()
    FR = vTB
    base_ms = [0, 1, 2, 3, 4, 5, 6, 7, 8, 10, 12, 14, 16, 20, 24, 28, 32, 40, 48, 56]
    BIDX = {m: i for i, m in enumerate(base_ms)}

    A.label("L_conv")
    A("s_load_dwordx16 s[4:19], s[0:1], 0")
    A("s_load_dwordx2 s[20:21], s[0:1], 64")
    A("s_load_dwordx2 s[46:47], s[0:1], 120")
    A("s_sub_u32 s%d, s2, %d" % (sT0, N_GEMM))
    A("s_and_b32 s%d, s%d, 7" % (sX, sT0))
    A("s_lshr_b32 s%d, s%d, 3" % (sY, sT0))
    A("s_mul_i32 s%d, s%d, 40" % (sCG, sX))
    A("s_add_u32 s%d, s%d, s%d" % (sCG, sCG, sY))
    A("v_lshrrev_b32 %s, 6, v0" % v(vT))
    A("v_and_b32 %s, 63, v0" % v(vL))
    A("v_readfirstlane_b32 s%d, %s" % (sWV, v(vT)))
    A("v_and_b32 %s, 15, v0" % v(vI))
    A("v_lshrrev_b32 %s, 4, %s" % (v(vG), v(vL)))
    A("s_lshr_b32 s%d, s%d, 1" % (sCH, sWV))
    A("s_and_b32 s%d, s%d, 1" % (sHW, sWV))
    A("s_lshl_b32 s%d, s%d, 1" % (sD, sCG))
    A("s_add_u32 s%d, s%d, s%d" % (sD, sD, sCH))
    A("s_lshl_b32 s%d, s%d, 2" % (sT0, sCG))
    A("s_waitcnt lgkmcnt(0)")
    A("s_load_dword s%d, s[18:19], s%d" % (sT2, sT0))
    A("s_load_dword s%d, s[20:21], s%d" % (sT3, sT0))
    A("v_and_b32 %s, 31, %s" % (v(vT), v(vL)))
    A("s_lshl_b32 s%d, s%d, 8" % (sT1, sD))
    A("s_lshl_b32 s%d, s%d, 7" % (sM0, sHW))
    A("s_add_u32 s%d, s%d, s%d" % (sT1, sT1, sM0))
    A("v_lshl_add_u32 %s, %s, 2, s%d" % (v(vT + 1), v(vT), sT1))
    for k in range(6):
        A("global_load_dword %s, %s, s[%d:%d]" % (v(vPar + k), v(vT + 1), 6 + 2 * k, 7 + 2 * k))
    A("s_movk_i32 s%d, 10240" % sT1)
    A("v_mul_u32_u24 %s, s%d, v0" % (v(vT + 2), sT1))
    A("v_add_u32 %s, s%d, %s" % (v(vT + 2), sT0, v(vT + 2)))
    for k in range(8):
        if k < 4:
            A("global_load_dword %s, %s, s[4:5] offset:%d" % (v(vU + k), v(vT + 2), k * 1280 - (0)) if k * 1280 < 4096 else "")
        if k == 3:
            A("v_add_u32 %s, 5120, %s" % (v(vT + 3), v(vT + 2)))
        if k >= 4:
            A("global_load_dword %s, %s, s[4:5] offset:%d" % (v(vU + k), v(vT + 3), (k - 4) * 1280))
    A("s_mov_b32 s48, s46"); A("s_and_b32 s49, s47, 0xffff"); A("s_mov_b32 s50, %d" % WS_SIZE); A("s_mov_b32 s51, 0x00020000")
    A("s_mul_i32 s%d, s%d, %d" % (sScr, sWV, SCR_SZ))
    A("s_add_u32 s%d, s%d, %d" % (sScr, sScr, SCR0))
    A("s_mul_i32 s%d, s%d, %d" % (sScrC, sCH, 2 * SCR_SZ))
    A("s_add_u32 s%d, s%d, %d" % (sScrC, sScrC, SCR0))
    A("s_xor_b32 s%d, s%d, 1" % (sT1, sWV))
    A("s_mul_i32 s%d, s%d, %d" % (sScrO, sT1, SCR_SZ))
    A("s_add_u32 s%d, s%d, %d" % (sScrO, sScrO, SCR0))
    A("s_mul_i32 s%d, s%d, %d" % (sUb, sCH, U_SZ))
    A("v_lshrrev_b32 %s, 5, %s" % (v(vT + 1), v(vL)))
    A("v_lshrrev_b32 %s, 2, %s" % (v(vT + 2), v(vT)))
    A("v_and_b32 %s, 3, %s" % (v(vT + 3), v(vT)))
    A("v_lshlrev_b32 %s, 2, %s" % (v(vT + 3), v(vT + 3)))
    A("v_lshl_add_u32 %s, %s, 7, %s" % (v(vT + 3), v(vT + 1), v(vT + 3)))
    A("v_add_u32 %s, s%d, %s" % (v(vT + 3), sScr, v(vT + 3)))
    for k in range(8):
        A("v_xor_b32 %s, %d, %s" % (v(vT + 4), k, v(vT + 2)))
        A("v_lshl_add_u32 %s, %s, 4, %s" % (v(vWA + k), v(vT + 4), v(vT + 3)))
    A("v_cmp_lt_u32 s[%d:%d], 31, %s" % (sM1, sM1 + 1, v(vL)))
    for s_ in range(4):
        if s_ == 0:
            A("v_mov_b32 %s, %s" % (v(vT + 4), v(vI)))
        else:
            A("v_lshlrev_b32 %s, %d, %s" % (v(vT + 4), s_, v(vI)))
            A("v_mov_b32 %s, 0" % v(vT + 5))
            for th in (16, 32, 64)[:s_]:
                A("v_cmp_le_u32 vcc, %d, %s" % (th, v(vT + 4)))
                A("s_nop 1")
                A("v_addc_co_u32 %s, vcc, 0, %s, vcc" % (v(vT + 5), v(vT + 5)))
            A("v_lshrrev_b32 %s, %s, %s" % (v(vT + 4), v(vT + 5), v(vT + 4)))
            A("v_lshl_add_u32 %s, %s, 3, %s" % (v(vT + 4), v(vT + 5), v(vT + 4)))
        A("v_and_b32 %s, 7, %s" % (v(vT + 5), v(vT + 4)))
        A("v_xor_b32 %s, %s, %s" % (v(vT + 5), v(vT + 5), v(vG)))
        A("v_lshlrev_b32 %s, 8, %s" % (v(vT + 4), v(vT + 4)))
        A("v_lshl_add_u32 %s, %s, 4, %s" % (v(vT + 4), v(vT + 5), v(vT + 4)))
        A("v_add_u32 %s, s%d, %s" % (v(vRA + 2 * s_), sScr, v(vT + 4)))
        A("v_xor_b32 %s, 64, %s" % (v(vT + 4), v(vT + 4)))
        A("v_add_u32 %s, s%d, %s" % (v(vRA + 2 * s_ + 1), sScr, v(vT + 4)))
    A("s_waitcnt lgkmcnt(0)")
    A("s_lshl_b32 s%d, s%d, 4" % (sT0, sCH))
    A("s_lshr_b32 s%d, s%d, s%d" % (sT2, sT2, sT0))
    A("s_lshl_b32 s%d, s%d, 16" % (sT2, sT2))
    A("s_lshr_b32 s%d, s%d, s%d" % (sT3, sT3, sT0))
    A("s_lshl_b32 s%d, s%d, 16" % (sDsk, sT3))
    A("v_mov_b32 %s, %s" % (v(vT), f32bits(math.log2(math.e))))
    A("v_mul_f32 %s, s%d, %s" % (v(vDt), sT2, v(vT)))
    A("v_exp_f32 %s, %s" % (v(vDt), v(vDt)))
    A("s_nop 0")
    A("v_cvt_pk_bf16_f32 %s, %s, %s" % (v(vDt), v(vDt), v(vDt)))
    A("v_lshlrev_b32 %s, 16, %s" % (v(vDt), v(vDt)))
    A("v_mov_b32 %s, %s" % (v(vT + 1), f32bits(16 * math.log2(math.e))))
    A("v_cndmask_b32 %s, %s, %s, s[%d:%d]" % (v(vT + 1), v(vT + 1), v(vT), sM1, sM1 + 1))
    A("v_mul_f32 %s, %s, %s" % (v(vC1), v(vDt), v(vT + 1)))
    A("v_mov_b32 %s, %s" % (v(vT + 1), f32bits(16 / (2 * math.pi))))
    A("v_mov_b32 %s, %s" % (v(vT + 2), f32bits(-1 / (2 * math.pi))))
    A("v_cndmask_b32 %s, %s, %s, s[%d:%d]" % (v(vT + 1), v(vT + 1), v(vT + 2), sM1, sM1 + 1))
    A("v_mul_f32 %s, %s, %s" % (v(vC2), v(vDt), v(vT + 1)))
    for k in range(16): A("v_mov_b32 %s, 0" % v(acc + k))
    A("s_mov_b32 s%d, 0" % sCnt)
    A("s_mov_b32 s%d, 0xffff0000" % sMask)
    A("s_waitcnt vmcnt(8)")

    def cmul(d, a_, p):
        A("v_pk_mul_f32 %s, %s, %s op_sel:[0,0] op_sel_hi:[1,0]" % (v(d, 2), v(a_, 2), v(p, 2)))
        return lambda: A("v_pk_fma_f32 %s, %s, %s, %s op_sel:[1,1,0] op_sel_hi:[0,1,1] neg_lo:[1,0,0]" % (v(d, 2), v(a_, 2), v(p, 2), v(d, 2)))

    A.label("L_c_pass")
    for k in range(6): A("v_lshlrev_b32 %s, 16, %s" % (v(vT + k), v(vPar + k)))
    for k in range(6): A("v_lshrrev_b32 %s, 16, %s" % (v(vPar + k), v(vPar + k)))
    er, ei = vPar + 6, vPar + 7
    A("v_mul_f32 %s, %s, %s" % (v(er), v(vT), v(vC1)))
    A("v_mul_f32 %s, %s, %s" % (v(ei), v(vT + 1), v(vC2)))
    A("v_mul_f32 %s, %s, %s" % (v(vT + 2), v(vT + 2), v(vDt)))
    A("v_mul_f32 %s, %s, %s" % (v(vT + 3), v(vT + 3), v(vDt)))
    T0 = vTB + 2 * BIDX[0]
    f = cmul(T0, vT + 4, vT + 2)
    e16r, e16i = vPar + 8, vPar + 9
    A("v_mul_f32 %s, 0x41800000, %s" % (v(e16r), v(er)))
    A("v_mul_f32 %s, 0x41800000, %s" % (v(e16i), v(ei)))
    f()
    A("v_fract_f32 %s, %s" % (v(ei), v(ei)))
    A("v_fract_f32 %s, %s" % (v(e16i), v(e16i)))
    A("v_exp_f32 %s, %s" % (v(er), v(er)))
    A("v_exp_f32 %s, %s" % (v(e16r), v(e16r)))
    A("v_cos_f32 %s, %s" % (v(vP + 0), v(ei)))
    A("v_sin_f32 %s, %s" % (v(vP + 1), v(ei)))
    A("v_cos_f32 %s, %s" % (v(vP + 8), v(e16i)))
    A("v_sin_f32 %s, %s" % (v(vP + 9), v(e16i)))
    A("v_cndmask_b32 %s, %s, 1.0, s[%d:%d]" % (v(T0), v(T0), sM1, sM1 + 1))
    A("v_cndmask_b32 %s, %s, 0, s[%d:%d]" % (v(T0 + 1), v(T0 + 1), sM1, sM1 + 1))
    A("v_mul_f32 %s, %s, %s" % (v(vP + 0), v(vP + 0), v(er)))
    A("v_mul_f32 %s, %s, %s" % (v(vP + 1), v(vP + 1), v(er)))
    A("v_mul_f32 %s, %s, %s" % (v(vP + 8), v(vP + 8), v(e16r)))
    A("v_mul_f32 %s, %s, %s" % (v(vP + 9), v(vP + 9), v(e16r)))
    for k in (1, 2, 3):
        f1 = cmul(vP + 2 * k, vP + 2 * (k - 1), vP + 2 * (k - 1))
        f2 = cmul(vP + 2 * (k + 4), vP + 2 * (k + 3), vP + 2 * (k + 3))
        f1(); f2()
    def emit_write(m, reg, tmp):
        row = IDX[m]
        A("v_cvt_pk_bf16_f32 %s, %s, %s" % (v(tmp), v(reg), v(reg + 1)))
        A("ds_write_b32 %s, %s offset:%d" % (v(vWA + (row & 7)), v(tmp), row * 256))
    emit_write(0, T0, vT)
    tt = 0
    for k in range(8):
        grp = [m for m in MS if m > 0 and (m.bit_length() - 1) == k]
        for b0 in range(0, len(grp), 4):
            batch = grp[b0:b0 + 4]
            regs = []; fs = []
            for m in batch:
                if m in BIDX: d = vTB + 2 * BIDX[m]
                else:
                    d = vTT + 2 * (tt % 8); tt += 1
                regs.append(d)
                fs.append(cmul(d, vTB + 2 * BIDX[m - (1 << k)], vP + 2 * k))
            for f in fs: f()
            for n_, (m, d) in enumerate(zip(batch, regs)):
                emit_write(m, d, vT + n_)
    A("s_waitcnt lgkmcnt(0)")
    for kap in range(2):
        f0 = FR + kap * 28
        for tau in range(3):
            A("ds_read_b128 %s, %s offset:%d" % (v(f0 + tau * 4, 4), v(vRA + kap), tau * 4096))
        for s_ in range(4):
            A("ds_read_b128 %s, %s offset:128" % (v(f0 + 12 + s_ * 4, 4), v(vRA + 2 * s_ + kap)))
    for kap in range(2):
        f0 = FR + kap * 28
        A("s_waitcnt lgkmcnt(%d)" % (7 if kap == 0 else 0))
        for pi, (s_, tau) in enumerate(((0, 0), (1, 1), (2, 1), (3, 2))):
            A("v_mfma_f32_16x16x32_bf16 %s, %s, %s, %s" % (v(acc + pi * 4, 4), v(f0 + 12 + s_ * 4, 4), v(f0 + tau * 4, 4), v(acc + pi * 4, 4)))
    A("s_add_u32 s%d, s%d, 1" % (sCnt, sCnt))
    A("s_cmp_lt_u32 s%d, 2" % sCnt)
    A("s_cbranch_scc1 L_c_pass")

    A("s_waitcnt vmcnt(0)")
    A("s_mov_b32 s%d, 0x05040100" % sT0)
    A("s_mov_b32 s%d, 0x07060302" % sT1)
    for k in range(4):
        A("v_perm_b32 %s, %s, %s, s%d" % (v(vTB + k), v(vU + 2 * k + 1), v(vU + 2 * k), sT0))
        A("v_perm_b32 %s, %s, %s, s%d" % (v(vTB + 4 + k), v(vU + 2 * k + 1), v(vU + 2 * k), sT1))
    A("v_lshlrev_b32 %s, 4, v0" % v(vT))
    A("ds_write_b128 %s, %s offset:512" % (v(vT), v(vTB, 4)))
    A("ds_write_b128 %s, %s offset:%d" % (v(vT), v(vTB + 4, 4), 512 + U_SZ))
    for k in range(4): A("v_mov_b32 %s, 0" % v(vTB + 8 + k))
    A("s_cmp_lg_u32 s%d, 0" % sWV)
    A("s_cbranch_scc1 L_c_nopad")
    A("v_lshrrev_b32 %s, 5, %s" % (v(vT + 1), v(vL)))
    A("v_and_b32 %s, 31, %s" % (v(vT + 2), v(vL)))
    A("v_lshlrev_b32 %s, 4, %s" % (v(vT + 2), v(vT + 2)))
    A("s_movk_i32 s%d, %d" % (sT0, U_SZ))
    A("v_mad_u32_u24 %s, %s, s%d, %s" % (v(vT + 1), v(vT + 1), sT0, v(vT + 2)))
    A("ds_write_b128 %s, %s" % (v(vT + 1), v(vTB + 8, 4)))
    A.label("L_c_nopad")
    A("v_cmp_gt_u32 vcc, 8, %s" % v(vI))
    A("v_lshlrev_b32 %s, 4, %s" % (v(vT + 1), v(vL)))
    A("v_add_u32 %s, s%d, %s" % (v(vT + 2), sScr, v(vT + 1)))
    A("v_add_u32 %s, s%d, %s" % (v(vT + 3), sScrO, v(vT + 1)))
    for k in range(4):
        A("v_cndmask_b32 %s, %s, %s, vcc" % (v(acc + 4 + k), v(acc + 8 + k), v(acc + 4 + k)))
    for g_, src in enumerate((acc, acc + 4, acc + 12)):
        A("ds_write_b128 %s, %s offset:%d" % (v(vT + 2), v(src, 4), g_ * 1024))
    A("s_waitcnt lgkmcnt(0)")
    A("s_barrier")
    for g_ in range(3):
        A("ds_read_b128 %s, %s offset:%d" % (v(vTB + g_ * 4, 4), v(vT + 3), g_ * 1024))
    A("v_lshlrev_b32 %s, 5, %s" % (v(vT + 1), v(vI)))
    A("v_lshl_add_u32 %s, %s, 3, %s" % (v(vT + 1), v(vG), v(vT + 1)))
    A("v_add_u32 %s, s%d, %s" % (v(vT + 1), sScrC, v(vT + 1)))
    A("s_waitcnt lgkmcnt(0)")
    for g_, src in enumerate((acc, acc + 4, acc + 12)):
        for k in range(4):
            A("v_add_f32 %s, %s, %s" % (v(src + k), v(src + k), v(vTB + g_ * 4 + k)))
        A("v_cvt_pk_bf16_f32 %s, %s, %s" % (v(vTB + 16 + g_ * 2), v(src), v(src + 1)))
        A("v_cvt_pk_bf16_f32 %s, %s, %s" % (v(vTB + 16 + g_ * 2 + 1), v(src + 2), v(src + 3)))
    A("s_cmp_eq_u32 s%d, 0" % sHW)
    A("s_cbranch_scc0 L_c_kc1")
    A("ds_write_b64 %s, %s offset:%d" % (v(vT + 1), v(vTB + 16, 2), KC_OFF + 32))
    A("ds_write_b64 %s, %s offset:%d" % (v(vT + 1), v(vTB + 20, 2), KC_OFF + 32 + 1024))
    A("v_mov_b32 %s, s%d" % (v(vT + 2), sScrC))
    A("v_mov_b32 %s, 0" % v(vTB)); A("v_mov_b32 %s, 0" % v(vTB + 1)); A("v_mov_b32 %s, 0" % v(vTB + 2)); A("v_mov_b32 %s, 0" % v(vTB + 3))
    A("ds_write_b128 %s, %s offset:%d" % (v(vT + 2), v(vTB, 4), KC_OFF))
    A("ds_write_b128 %s, %s offset:%d" % (v(vT + 2), v(vTB, 4), KC_OFF + 16))
    A("s_branch L_c_kc2")
    A.label("L_c_kc1")
    A("ds_write_b64 %s, %s offset:%d" % (v(vT + 1), v(vTB + 18, 2), KC_OFF + 32 + 512))
    A.label("L_c_kc2")
    A("s_waitcnt lgkmcnt(0)")
    A("s_barrier")
    KB = KC_OFF + 32
    W = vTB
    A("s_mov_b32 s%d, 0x01000100" % sT0)
    A("s_mov_b32 s%d, 0x03020302" % sT1)
    A("v_lshlrev_b32 %s, 4, %s" % (v(vT + 7), v(vL)))
    A("v_add_u32 %s, s%d, %s" % (v(vT + 7), sScrC, v(vT + 7)))
    A("s_cmp_eq_u32 s%d, 0" % sHW)
    A("s_cbranch_scc0 L_c_exp1")
    A("v_lshlrev_b32 %s, 1, %s" % (v(vT), v(vL)))
    A("v_sub_u32 %s, s%d, %s" % (v(vT), sScrC, v(vT)))
    for it in range(2):
        A("ds_read_u16 %s, %s offset:%d" % (v(W + it), v(vT), KB + 2 * (640 - 64 * it)))
        A("ds_read_u16 %s, %s offset:%d" % (v(W + 2 + it), v(vT), KB + 2 * (639 - 64 * it)))
    A("v_and_b32 %s, 1, %s" % (v(vT + 1), v(vL)))
    A("v_cmp_eq_u32 vcc, 0, %s" % v(vT + 1))
    A("s_waitcnt lgkmcnt(0)")
    for it in range(2):
        c0, c1 = W + 4 + it * 8, W + 8 + it * 8
        ab = W + it
        A("v_lshl_or_b32 %s, %s, 16, %s" % (v(ab), v(W + 2 + it), v(ab)))
        A("v_perm_b32 %s, %s, %s, s%d" % (v(c0), v(ab), v(ab), sT0))
        A("v_perm_b32 %s, %s, %s, s%d" % (v(c0 + 3), v(ab), v(ab), sT1))
        A("v_mov_b32 %s, %s" % (v(c0 + 1), v(c0)))
        A("v_cndmask_b32 %s, %s, %s, vcc" % (v(c0 + 2), v(c0 + 3), v(ab)))
        A("v_mov_b32 %s, %s" % (v(c1), v(c0)))
        A("v_cndmask_b32 %s, %s, %s, vcc" % (v(c1 + 1), v(ab), v(c0)))
        A("v_mov_b32 %s, %s" % (v(c1 + 2), v(c0 + 3)))
        A("v_mov_b32 %s, %s" % (v(c1 + 3), v(c0 + 3)))
        A("ds_write_b128 %s, %s offset:%d" % (v(vT + 7), v(c0, 4), it * 1024))
        A("ds_write_b128 %s, %s offset:%d" % (v(vT + 7), v(c1, 4), R1_OFF + it * 1024))
    A("s_branch L_c_exp2")
    A.label("L_c_exp1")
    A("v_lshlrev_b32 %s, 2, %s" % (v(vT), v(vL)))
    A("v_sub_u32 %s, s%d, %s" % (v(vT), sScrC, v(vT)))
    A("ds_read_u16 %s, %s offset:%d" % (v(W), v(vT), KB + 2 * 512))
    A("ds_read_b32 %s, %s offset:%d" % (v(W + 1), v(vT), KB + 2 * 510))
    A("v_lshlrev_b32 %s, 3, %s" % (v(vT + 1), v(vL)))
    A("v_sub_u32 %s, s%d, %s" % (v(vT + 1), sScrC, v(vT + 1)))
    A("ds_read_u16 %s, %s offset:%d" % (v(W + 2), v(vT + 1), KB + 2 * 384))
    A("ds_read_b64 %s, %s offset:%d" % (v(W + 4, 2), v(vT + 1), KB + 2 * 380))
    A("v_min_u32 %s, 33, %s" % (v(vT + 2), v(vL)))
    A("v_lshlrev_b32 %s, 4, %s" % (v(vT + 2), v(vT + 2)))
    A("v_sub_u32 %s, s%d, %s" % (v(vT + 2), sScrC, v(vT + 2)))
    A("ds_read_u16 %s, %s offset:%d" % (v(W + 3), v(vT + 2), KB + 2 * 256))
    A("ds_read_b128 %s, %s offset:%d" % (v(W + 8, 4), v(vT + 2), KB + 2 * 248))
    A("s_mov_b32 s%d, 0x07060100" % sT2)
    A("s_mov_b32 s%d, 0x01000302" % sT3)
    A("s_mov_b32 s%d, 0x05040302" % sM0)
    A("s_waitcnt lgkmcnt(4)")
    c0, c1 = W + 12, W + 16
    a_, cb = W, W + 1
    A("v_perm_b32 %s, %s, %s, s%d" % (v(c0), v(a_), v(a_), sT0))
    A("v_perm_b32 %s, %s, %s, s%d" % (v(c0 + 1), v(cb), v(a_), sT2))
    A("v_perm_b32 %s, %s, %s, s%d" % (v(c0 + 2), v(cb), v(cb), sT1))
    A("v_perm_b32 %s, %s, %s, s%d" % (v(c0 + 3), v(cb), v(cb), sT0))
    A("v_mov_b32 %s, %s" % (v(c1), v(c0)))
    A("v_mov_b32 %s, %s" % (v(c1 + 1), v(c0 + 2)))
    A("v_perm_b32 %s, %s, %s, s%d" % (v(c1 + 2), v(cb), v(cb), sT3))
    A("v_mov_b32 %s, %s" % (v(c1 + 3), v(c0 + 3)))
    A("ds_write_b128 %s, %s offset:%d" % (v(vT + 7), v(c0, 4), 2048))
    A("ds_write_b128 %s, %s offset:%d" % (v(vT + 7), v(c1, 4), R1_OFF + 2048))
    A("s_waitcnt lgkmcnt(4)")
    c0, c1 = W + 20, W + 24
    a_, ed, cb = W + 2, W + 4, W + 5
    A("v_perm_b32 %s, %s, %s, s%d" % (v(c0), v(a_), v(a_), sT0))
    A("v_perm_b32 %s, %s, %s, s%d" % (v(c0 + 1), v(cb), v(cb), sT3))
    A("v_perm_b32 %s, %s, %s, s%d" % (v(c0 + 2), v(cb), v(cb), sT0))
    A("v_perm_b32 %s, %s, %s, s%d" % (v(c0 + 3), v(ed), v(ed), sT3))
    A("v_perm_b32 %s, %s, %s, s%d" % (v(c1), v(cb), v(a_), sT2))
    A("v_mov_b32 %s, %s" % (v(c1 + 1), v(c0 + 2)))
    A("v_perm_b32 %s, %s, %s, s%d" % (v(c1 + 2), v(ed), v(cb), sT2))
    A("v_perm_b32 %s, %s, %s, s%d" % (v(c1 + 3), v(ed), v(ed), sT0))
    A("s_mov_b64 exec, 0xffffffff")
    A("ds_write_b128 %s, %s offset:%d" % (v(vT + 7), v(c0, 4), 3072))
    A("ds_write_b128 %s, %s offset:%d" % (v(vT + 7), v(c1, 4), R1_OFF + 3072))
    A("s_mov_b64 exec, -1")
    A("s_waitcnt lgkmcnt(4)")
    c0, c1 = W + 28, W + 32
    a_, W0 = W + 3, W + 8
    A("v_perm_b32 %s, %s, %s, s%d" % (v(c0), v(W0 + 3), v(a_), sT2))
    A("v_perm_b32 %s, %s, %s, s%d" % (v(c0 + 1), v(W0 + 2), v(W0 + 3), sT2))
    A("v_perm_b32 %s, %s, %s, s%d" % (v(c0 + 2), v(W0 + 1), v(W0 + 2), sT2))
    A("v_perm_b32 %s, %s, %s, s%d" % (v(c0 + 3), v(W0), v(W0 + 1), sT2))
    for k in range(4):
        A("v_perm_b32 %s, %s, %s, s%d" % (v(c1 + k), v(W0 + 3 - k), v(W0 + 3 - k), sT3))
    A("s_mov_b32 s%d, -1" % sM0); A("s_mov_b32 s%d, 3" % (sM0 + 1))
    A("s_mov_b64 exec, s[%d:%d]" % (sM0, sM0 + 1))
    A("ds_write_b128 %s, %s offset:%d" % (v(vT + 7), v(c0, 4), 3584))
    A("ds_write_b128 %s, %s offset:%d" % (v(vT + 7), v(c1, 4), R1_OFF + 3584))
    A("s_mov_b64 exec, -1")
    A.label("L_c_exp2")

    R.reset(mark)
    vAA = R.alloc(4)
    vFA = R.alloc()
    AF = R.alloc(32, 4)
    FF = R.alloc(32, 4)
    A("v_and_b32 %s, 1, %s" % (v(vT), v(vI)))
    A("v_add_u32 %s, %s, %s" % (v(vT + 1), v(vI), v(vT)))
    A("v_lshlrev_b32 %s, 3, %s" % (v(vT + 2), v(vG)))
    A("v_sub_u32 %s, %s, %s" % (v(vT + 2), v(vT + 2), v(vT + 1)))
    A("v_lshlrev_b32 %s, 1, %s" % (v(vT + 2), v(vT + 2)))
    A("s_movk_i32 s%d, %d" % (sT0, R1_OFF))
    A("v_mad_u32_u24 %s, %s, s%d, %s" % (v(vT + 2), v(vT), sT0, v(vT + 2)))
    A("s_lshl_b32 s%d, s%d, 6" % (sT0, sHW))
    A("s_sub_u32 s%d, s%d, s%d" % (sT1, sScrC, sT0))
    for p in range(4):
        A("s_add_u32 s%d, s%d, %d" % (sT2, sT1, 4064 - 512 * (2 * p + 1)))
        A("v_add_u32 %s, s%d, %s" % (v(vAA + p), sT2, v(vT + 2)))
    A("v_lshlrev_b32 %s, 5, %s" % (v(vT), v(vI)))
    A("v_lshl_add_u32 %s, %s, 4, %s" % (v(vT), v(vG), v(vT)))
    A("s_sub_u32 s%d, s%d, s%d" % (sT1, sUb, sT0))
    A("s_add_u32 s%d, s%d, 480" % (sT1, sT1))
    A("v_add_u32 %s, s%d, %s" % (v(vFA), sT1, v(vT)))
    for k in range(32): A("v_mov_b32 %s, 0" % v(acc + k))
    A("s_waitcnt lgkmcnt(0)")
    A("s_barrier")
    def rdA(q):
        p = q >> 1
        o = 128 * (2 * p + 1 - q)
        A("ds_read2_b32 %s, %s offset0:%d offset1:%d" % (v(AF + q * 4, 2), v(vAA + p), o, o + 1))
        A("ds_read2_b32 %s, %s offset0:%d offset1:%d" % (v(AF + q * 4 + 2, 2), v(vAA + p), o + 2, o + 3))
    def rdF(a_):
        A("ds_read_b128 %s, %s offset:%d" % (v(FF + a_ * 4, 4), v(vFA), 512 * a_))
    A("s_mov_b32 s%d, 0" % sCnt)
    A.label("L_c_loop")
    for a_ in range(8): rdF(a_)
    for q in range(8): rdA(q)
    for p in range(4): A("v_subrev_u32 %s, 128, %s" % (v(vAA + p), v(vAA + p)))
    A("v_subrev_u32 %s, 128, %s" % (v(vFA), v(vFA)))
    for q in range(8):
        A("s_waitcnt lgkmcnt(%d)" % min(15, 2 * (7 - q)))
        for a_ in range(q, 8):
            A("v_mfma_f32_16x16x32_bf16 %s, %s, %s, %s" % (v(acc + a_ * 4, 4), v(AF + q * 4, 4), v(FF + (a_ - q) * 4, 4), v(acc + a_ * 4, 4)))
    A("s_add_u32 s%d, s%d, 1" % (sCnt, sCnt))
    A("s_cmp_lt_u32 s%d, 4" % sCnt)
    A("s_cbranch_scc1 L_c_loop")
    A("v_lshlrev_b32 %s, 4, %s" % (v(vT), v(vL)))
    A("s_lshl_b32 s%d, s%d, 12" % (sT0, sHW))
    A("s_add_u32 s%d, s%d, s%d" % (sT1, sScrC, sT0))
    A("s_add_u32 s%d, s%d, %d" % (sT1, sT1, SCR_SZ))
    A("v_add_u32 %s, s%d, %s" % (v(vT + 1), sT1, v(vT)))
    A("s_xor_b32 s%d, s%d, 4096" % (sT0, sT0))
    A("s_add_u32 s%d, s%d, s%d" % (sT1, sScrC, sT0))
    A("s_add_u32 s%d, s%d, %d" % (sT1, sT1, SCR_SZ))
    A("v_add_u32 %s, s%d, %s" % (v(vT + 2), sT1, v(vT)))
    A("s_nop 4")
    A("s_cmp_eq_u32 s%d, 0" % sHW)
    A("s_cbranch_scc1 L_c_x0")
    for k in range(4):
        A("ds_write_b128 %s, %s offset:%d" % (v(vT + 1), v(acc + k * 4, 4), k * 1024))
    for k in range(16): A("v_mov_b32 %s, %s" % (v(acc + k), v(acc + 16 + k)))
    A("s_branch L_c_x1")
    A.label("L_c_x0")
    for k in range(4):
        A("ds_write_b128 %s, %s offset:%d" % (v(vT + 1), v(acc + 16 + k * 4, 4), k * 1024))
    A.label("L_c_x1")
    A("v_lshlrev_b32 %s, 5, %s" % (v(vT + 3), v(vI)))
    A("v_lshl_add_u32 %s, %s, 3, %s" % (v(vT + 3), v(vG), v(vT + 3)))
    A("s_lshl_b32 s%d, s%d, 11" % (sT0, sHW))
    A("s_add_u32 s%d, s%d, s%d" % (sT1, sUb, sT0))
    A("v_add_u32 %s, s%d, %s" % (v(vT + 4), sT1, v(vT + 3)))
    for k in range(4):
        A("ds_read_b64 %s, %s offset:%d" % (v(FF + k * 2, 2), v(vT + 4), 512 + 512 * k))
    A("s_waitcnt lgkmcnt(0)")
    A("s_barrier")
    for k in range(4):
        A("ds_read_b128 %s, %s offset:%d" % (v(AF + k * 4, 4), v(vT + 2), k * 1024))
    A("s_lshl_b32 s%d, s%d, 12" % (sT1, sD))
    A("s_add_u32 s%d, s%d, s%d" % (sT1, sT1, sT0))
    A("s_add_u32 s%d, s%d, %d" % (sT1, sT1, AT_OFF))
    S = FF + 8
    for k in range(4):
        for h in range(2):
            A("v_lshlrev_b32 %s, 16, %s" % (v(S + k * 4 + 2 * h), v(FF + k * 2 + h)))
            A("v_and_b32 %s, s%d, %s" % (v(S + k * 4 + 2 * h + 1), sMask, v(FF + k * 2 + h)))
        for e in range(4): A("v_mul_f32 %s, s%d, %s" % (v(S + k * 4 + e), sDsk, v(S + k * 4 + e)))
        for h in range(2):
            A("v_cvt_pk_bf16_f32 %s, %s, %s" % (v(vT + 5), v(S + k * 4 + 2 * h), v(S + k * 4 + 2 * h + 1)))
            A("v_lshlrev_b32 %s, 16, %s" % (v(S + k * 4 + 2 * h), v(vT + 5)))
            A("v_and_b32 %s, s%d, %s" % (v(S + k * 4 + 2 * h + 1), sMask, v(vT + 5)))
    A("s_waitcnt lgkmcnt(0)")
    for k in range(4):
        y = acc + k * 4
        for e in range(4): A("v_add_f32 %s, %s, %s" % (v(y + e), v(y + e), v(AF + k * 4 + e)))
        for h in range(2):
            A("v_cvt_pk_bf16_f32 %s, %s, %s" % (v(vT + 5), v(y + 2 * h), v(y + 2 * h + 1)))
            A("v_lshlrev_b32 %s, 16, %s" % (v(y + 2 * h), v(vT + 5)))
            A("v_and_b32 %s, s%d, %s" % (v(y + 2 * h + 1), sMask, v(vT + 5)))
        for e in range(4): A("v_add_f32 %s, %s, %s" % (v(y + e), v(y + e), v(S + k * 4 + e)))
        A("v_cvt_pk_bf16_f32 %s, %s, %s" % (v(acc + 16 + 2 * k), v(y), v(y + 1)))
        A("v_cvt_pk_bf16_f32 %s, %s, %s" % (v(acc + 16 + 2 * k + 1), v(y + 2), v(y + 3)))
        A("buffer_store_dwordx2 %s, %s, s[48:51], s%d offen offset:%d" % (v(acc + 16 + 2 * k, 2), v(vT + 3), sT1, 512 * k))
    A("s_endpgm")
    return R.hi
```

```python
from asmlib import *
from layout import *
import math

def gen_gemm(A):
    sX, sY, sRB, sHP, sW = 22, 23, 24, 25, 26
    sT0, sT1, sT2, sT3 = 28, 29, 30, 31
    SRDX, SRDW, SRDS, SRDO = 4, 8, 12, 16
    sGW, sDBG = 20, 32
    sXk0, sXk1, sWk, sSt, sNx, sDl, sCnt, sWq = 34, 35, 36, 37, 38, 39, 40, 41
    sLog2e, sEps, sH = 42, 43, 44
    sM0, sM1 = 46, 48
    sF = 50
    R = RegAlloc(1, 168)
    vL, vI, vG = R.alloc(), R.alloc(), R.alloc()
    vXo = R.alloc()
    vD0, vD1 = R.alloc(), R.alloc()
    vTR = R.alloc(8)
    vT = R.alloc(8, 2)
    acc = R.alloc(64, 4)
    WF = R.alloc(32, 4)
    X = R.alloc(32, 4)
    def ACC(T, st): return acc + (T * 2 + st) * 4

    A.label("L_gemm")
    A("s_load_dwordx2 s[4:5], s[0:1], 0")
    A("s_load_dwordx4 s[8:11], s[0:1], 80")
    A("s_load_dwordx2 s[20:21], s[0:1], 96")
    A("s_load_dwordx4 s[32:35], s[0:1], 112")
    A("s_and_b32 s%d, s2, 7" % sX)
    A("s_lshr_b32 s%d, s2, 3" % sY)
    A("s_lshr_b32 s%d, s%d, 1" % (sT0, sX))
    A("s_lshl_b32 s%d, s%d, 2" % (sT0, sT0))
    A("s_and_b32 s%d, s%d, 3" % (sT1, sY))
    A("s_add_u32 s%d, s%d, s%d" % (sRB, sT0, sT1))
    A("s_and_b32 s%d, s%d, 1" % (sT0, sX))
    A("s_lshl_b32 s%d, s%d, 3" % (sT0, sT0))
    A("s_lshr_b32 s%d, s%d, 2" % (sT1, sY))
    A("s_add_u32 s%d, s%d, s%d" % (sHP, sT0, sT1))
    A("v_lshrrev_b32 %s, 6, v0" % v(vT))
    A("v_and_b32 %s, 63, v0" % v(vL))
    A("v_readfirstlane_b32 s%d, %s" % (sW, v(vT)))
    A("v_and_b32 %s, 15, v0" % v(vI))
    A("v_lshrrev_b32 %s, 4, %s" % (v(vG), v(vL)))
    A("s_waitcnt lgkmcnt(0)")
    A("s_mov_b32 s16, s10"); A("s_and_b32 s17, s11, 0xffff"); A("s_mov_b32 s18, 819200"); A("s_mov_b32 s19, 0x00020000")
    A("s_and_b32 s5, s5, 0xffff"); A("s_mov_b32 s6, 2621440"); A("s_mov_b32 s7, 0x00020000")
    A("s_and_b32 s9, s9, 0xffff"); A("s_mov_b32 s10, 2457600"); A("s_mov_b32 s11, 0x00020000")
    A("s_mov_b32 s12, s34"); A("s_and_b32 s13, s35, 0xffff"); A("s_mov_b32 s14, %d" % WS_SIZE); A("s_mov_b32 s15, 0x00020000")
    A("s_mov_b32 s%d, %s" % (sLog2e, f32bits(math.log2(math.e))))
    A("s_mov_b32 s%d, %s" % (sEps, f32bits(1e-6)))

    vZ = WF
    A("s_or_b32 s%d, s%d, s%d" % (sT0, sRB, sW))
    A("s_cmp_lg_u32 s%d, 0" % sT0)
    A("s_cbranch_scc1 L_g_nozero")
    for k in range(4): A("v_mov_b32 %s, 0" % v(vZ + k))
    A("v_lshlrev_b32 %s, 4, %s" % (v(vT), v(vL)))
    A("s_mul_i32 s%d, s%d, 5120" % (sT0, sHP))
    for q in range(4):
        A("buffer_store_dwordx4 %s, %s, s[12:15], s%d offen offset:%d sc1" % (v(vZ, 4), v(vT), sT0, q * 1024))
    A("s_add_u32 s%d, s%d, 4096" % (sT0, sT0))
    A("buffer_store_dwordx4 %s, %s, s[12:15], s%d offen sc1" % (v(vZ, 4), v(vT), sT0))
    A.label("L_g_nozero")

    gx, gw = X, X + 12
    A("s_lshl_b32 s%d, s%d, 7" % (sT0, sRB))
    A("s_lshl_b32 s%d, s%d, 3" % (sT1, sHP))
    A("s_add_u32 s%d, s%d, s%d" % (sT0, sT0, sT1))
    A("s_lshl_b32 s%d, s%d, 1" % (sT1, sW))
    A("s_add_u32 s%d, s%d, s%d" % (sT0, sT0, sT1))
    vGr = WF + 8
    A("v_lshrrev_b32 %s, 5, %s" % (v(vGr), v(vL)))
    A("v_add_u32 %s, s%d, %s" % (v(vGr), sT0, v(vGr)))
    A("v_and_b32 %s, 31, %s" % (v(vT + 1), v(vL)))
    A("v_mul_u32_u24 %s, 40, %s" % (v(vT + 1), v(vT + 1)))
    A("s_movk_i32 s%d, 1280" % sT1)
    A("v_mad_u32_u24 %s, %s, s%d, %s" % (v(vT + 2), v(vGr), sT1, v(vT + 1)))
    A("buffer_load_dwordx4 %s, %s, s[4:7], 0 offen" % (v(gx, 4), v(vT + 2)))
    A("buffer_load_dwordx4 %s, %s, s[4:7], 0 offen offset:16" % (v(gx + 4, 4), v(vT + 2)))
    A("buffer_load_dwordx2 %s, %s, s[4:7], 0 offen offset:32" % (v(gx + 8, 2), v(vT + 2)))
    A("global_load_dwordx4 %s, %s, s[20:21]" % (v(gw, 4), v(vT + 1)))
    A("global_load_dwordx4 %s, %s, s[20:21] offset:16" % (v(gw + 4, 4), v(vT + 1)))
    A("global_load_dwordx2 %s, %s, s[20:21] offset:32" % (v(gw + 8, 2), v(vT + 1)))

    vWO = WF + 4
    A("s_lshl_b32 s%d, s2, 2" % sF)
    A("s_add_u32 s%d, s%d, s%d" % (sF, sF, sW))
    A("s_cmp_ge_u32 s%d, 800" % sF)
    A("s_cbranch_scc1 L_g_nowof")
    A("s_mul_i32 s%d, s%d, 3277" % (sT0, sF))
    A("s_lshr_b32 s%d, s%d, 16" % (sT0, sT0))
    A("s_mul_i32 s%d, s%d, 20" % (sT1, sT0))
    A("s_sub_u32 s%d, s%d, s%d" % (sT1, sF, sT1))
    A("s_lshr_b32 s%d, s%d, 1" % (sT2, sT0))
    A("s_lshl_b32 s%d, s%d, 5" % (sT2, sT2))
    A("s_and_b32 s%d, s%d, 1" % (sT3, sT0))
    A("s_lshl_b32 s%d, s%d, 2" % (sT3, sT3))
    A("s_add_u32 s%d, s%d, s%d" % (sT2, sT2, sT3))
    A("v_lshrrev_b32 %s, 2, %s" % (v(vT + 1), v(vI)))
    A("v_and_b32 %s, 3, %s" % (v(vT + 2), v(vI)))
    A("v_lshl_add_u32 %s, %s, 3, %s" % (v(vT + 1), v(vT + 1), v(vT + 2)))
    A("v_add_u32 %s, s%d, %s" % (v(vT + 1), sT2, v(vT + 1)))
    A("v_lshlrev_b32 %s, 1, %s" % (v(vT + 1), v(vT + 1)))
    A("s_movk_i32 s%d, 5120" % sT2)
    A("v_mad_u32_u24 %s, %s, s%d, %s" % (v(vT + 2), v(vG), sT2, v(vT + 1)))
    A("s_movk_i32 s%d, 1280" % sT2)
    A("v_mad_u32_u24 %s, %s, s%d, %s" % (v(vT + 3), v(vG), sT2, v(vT + 1)))
    A("s_mul_i32 s%d, s%d, 205" % (sT0, sT1))
    A("s_lshr_b32 s%d, s%d, 10" % (sT0, sT0))
    A("s_mul_i32 s%d, s%d, 5" % (sT2, sT0))
    A("s_sub_u32 s%d, s%d, s%d" % (sT1, sT1, sT2))
    A("s_lshl_b32 s%d, s%d, 3" % (sT1, sT1))
    A("s_mul_i32 s%d, s%d, %d" % (sT0, sT0, 160 * 1280))
    for j in range(8):
        A("s_add_u32 s%d, s%d, %d" % (sT2, sT1, j))
        A("s_mul_i32 s%d, s%d, 205" % (sT3, sT2))
        A("s_lshr_b32 s%d, s%d, 10" % (sT3, sT3))
        A("s_mul_i32 s%d, s%d, 5" % (sH, sT3))
        A("s_sub_u32 s%d, s%d, s%d" % (sT2, sT2, sH))
        A("s_mul_i32 s%d, s%d, 20" % (sT3, sT3))
        A("s_cmp_eq_u32 s%d, 4" % sT2)
        A("s_cselect_b32 s%d, 16, s%d" % (sT2, sT2))
        A("s_cselect_b64 s[%d:%d], -1, 0" % (sM0, sM0 + 1))
        A("s_add_u32 s%d, s%d, s%d" % (sT3, sT3, sT2))
        A("s_mul_i32 s%d, s%d, 1280" % (sT3, sT3))
        A("s_add_u32 s%d, s%d, s%d" % (sT3, sT3, sT0))
        tmp = vT + 4 + (j & 1)
        A("v_cndmask_b32 %s, %s, %s, s[%d:%d]" % (v(tmp), v(vT + 2), v(vT + 3), sM0, sM0 + 1))
        A("buffer_load_ushort %s, %s, s[16:19], s%d offen" % (v(vWO + j // 2 + (8 if j & 1 else 0)), v(tmp), sT3))
    A.label("L_g_nowof")

    A("s_lshl_b32 s%d, s%d, 7" % (sT0, sRB))
    A("s_lshl_b32 s%d, s%d, 5" % (sT1, sW))
    A("s_add_u32 s%d, s%d, s%d" % (sT0, sT0, sT1))
    A("v_add_u32 %s, s%d, %s" % (v(vT), sT0, v(vI)))
    A("v_lshlrev_b32 %s, 4, %s" % (v(vT + 1), v(vG)))
    A("s_movk_i32 s%d, 1280" % sT1)
    A("v_mad_u32_u24 %s, %s, s%d, %s" % (v(vXo), v(vT), sT1, v(vT + 1)))
    A("s_lshl_b32 s%d, s%d, 4" % (sT0, sW))
    A("v_add_u32 %s, s%d, %s" % (v(vT), sT0, v(vG)))
    A("s_movk_i32 s%d, 3840" % sT1)
    A("s_mul_i32 s%d, s%d, 80" % (sT2, sHP))
    A("v_mul_u32_u24 %s, s%d, %s" % (v(vT), sT1, v(vT)))
    A("v_add_u32 %s, s%d, %s" % (v(vT), sT2, v(vT)))
    for pq, vd in ((0, vD0), (1, vD1)):
        A("v_lshlrev_b32 %s, 1, %s" % (v(vT + 1), v(vG)))
        A("v_sub_u32 %s, %s, %s" % (v(vT + 1), v(vI), v(vT + 1)))
        if pq: A("v_subrev_u32 %s, 8, %s" % (v(vT + 1), v(vT + 1)))
        A("v_and_b32 %s, 15, %s" % (v(vT + 1), v(vT + 1)))
        A("v_mul_u32_u24 %s, 205, %s" % (v(vT + 2), v(vT + 1)))
        A("v_lshrrev_b32 %s, 10, %s" % (v(vT + 2), v(vT + 2)))
        A("v_mul_u32_u24 %s, 1200, %s" % (v(vT + 3), v(vT + 2)))
        A("v_lshl_add_u32 %s, %s, 4, %s" % (v(vT + 3), v(vT + 1), v(vT + 3)))
        A("v_add_u32 %s, %s, %s" % (v(vd), v(vT + 3), v(vT)))
        A("v_cmp_eq_u32 vcc, 15, %s" % v(vT + 1))
        A("v_mov_b32 %s, 0x40000000" % v(vT + 2))
        A("s_nop 0")
        A("v_cndmask_b32 %s, %s, %s, vcc" % (v(vd), v(vd), v(vT + 2)))
    A("v_lshrrev_b32 %s, 2, %s" % (v(vT), v(vI)))
    A("v_and_b32 %s, 1, %s" % (v(vT + 1), v(vG)))
    A("v_lshl_add_u32 %s, %s, 2, %s" % (v(vT + 1), v(vT + 1), v(vT)))
    A("v_lshlrev_b32 %s, 1, %s" % (v(vT + 1), v(vT + 1)))
    A("v_lshl_add_u32 %s, %s, 3, %s" % (v(vT + 2), v(vG), v(vT)))
    A("v_lshlrev_b32 %s, 8, %s" % (v(vT + 2), v(vT + 2)))
    A("v_and_b32 %s, 3, %s" % (v(vT + 3), v(vI)))
    A("v_lshlrev_b32 %s, 3, %s" % (v(vT + 3), v(vT + 3)))
    for T in range(8):
        qc = QS[T][0] | QS[T][1] << 8 | QS[T][2] << 16 | QS[T][3] << 24
        A("s_mov_b32 s%d, 0x%x" % (sT0, qc))
        A("v_bfe_u32 %s, s%d, %s, 8" % (v(vT + 4), sT0, v(vT + 3)))
        A("v_lshrrev_b32 %s, 1, %s" % (v(vT + 5), v(vT + 4)))
        A("v_add_u32 %s, %s, %s" % (v(vT + 5), v(vT + 5), v(vT + 1)))
        A("v_and_b32 %s, 15, %s" % (v(vT + 5), v(vT + 5)))
        A("v_lshl_add_u32 %s, %s, 4, %s" % (v(vT + 5), v(vT + 5), v(vT + 2)))
        A("v_and_b32 %s, 1, %s" % (v(vT + 4), v(vT + 4)))
        A("v_lshl_add_u32 %s, %s, 3, %s" % (v(vTR + T), v(vT + 4), v(vT + 5)))
    A("s_lshl_b32 s%d, s%d, 12" % (sWq, sW))

    def dma(stage_sgpr_or_imm):
        for q in range(4):
            if isinstance(stage_sgpr_or_imm, int):
                A("s_add_u32 m0, s%d, %d" % (sWq, stage_sgpr_or_imm + q * 1024))
            else:
                A("s_add_u32 s%d, s%d, %s" % (sT0, sWq, stage_sgpr_or_imm))
                A("s_add_u32 m0, s%d, %d" % (sT0, q * 1024))
            A("s_add_u32 s%d, s%d, %d" % (sT1, sWk, q * 15360))
            A("buffer_load_dwordx4 %s, s[8:11], s%d offen lds" % (v(vD0 if q < 2 else vD1), sT1))
        A("s_add_u32 s%d, s%d, 245760" % (sWk, sWk))

    A("s_mov_b32 s%d, 0" % sWk)
    dma(0); dma(16384); dma(32768)
    A("s_waitcnt vmcnt(12)")
    A("s_or_b32 s%d, s%d, s%d" % (sT0, sRB, sW))
    A("s_cmp_lg_u32 s%d, 0" % sT0)
    A("s_cbranch_scc1 L_g_noflag")
    A("s_lshl_b32 s%d, s%d, 2" % (sT0, sHP))
    A("v_mov_b32 %s, s%d" % (v(vT), sT0))
    A("v_mov_b32 %s, 1" % v(vT + 1))
    A("s_mov_b64 exec, 1")
    A("global_atomic_add %s, %s, s[32:33]" % (v(vT), v(vT + 1)))
    A("s_mov_b64 exec, -1")
    A.label("L_g_noflag")
    A("s_cmp_ge_u32 s%d, 800" % sF)
    A("s_cbranch_scc1 L_g_nowof2")
    A("s_lshl_b32 s%d, s%d, 10" % (sT0, sF))
    A("s_add_u32 s%d, s%d, %d" % (sT0, sT0, WOF_OFF))
    A("v_lshlrev_b32 %s, 4, %s" % (v(vT), v(vL)))
    for k in range(4): A("v_lshl_or_b32 %s, %s, 16, %s" % (v(vWO + k), v(vWO + 8 + k), v(vWO + k)))
    A("buffer_store_dwordx4 %s, %s, s[12:15], s%d offen" % (v(vWO, 4), v(vT), sT0))
    A.label("L_g_nowof2")
    vS = vT + 6
    A("v_mov_b32 %s, 0" % v(vS))
    A("s_mov_b32 s%d, 0x3f803f80" % sT0)
    A("s_mov_b32 s%d, 0xffff0000" % sT1)
    for k in range(10):
        A("v_lshlrev_b32 %s, 16, %s" % (v(vT), v(gx + k)))
        A("v_and_b32 %s, s%d, %s" % (v(vT + 1), sT1, v(gx + k)))
        A("v_lshlrev_b32 %s, 16, %s" % (v(vT + 2), v(gw + k)))
        A("v_and_b32 %s, s%d, %s" % (v(vT + 3), sT1, v(gw + k)))
        A("v_pk_mul_f32 %s, %s, %s" % (v(vT, 2), v(vT, 2), v(vT + 2, 2)))
        A("v_cvt_pk_bf16_f32 %s, %s, %s" % (v(vT + 4), v(vT), v(vT + 1)))
        A("v_lshlrev_b32 %s, 16, %s" % (v(vT), v(vT + 4)))
        A("v_and_b32 %s, s%d, %s" % (v(vT + 1), sT1, v(vT + 4)))
        A("v_add_f32 %s, %s, %s" % (v(vS), v(vS), v(vT)))
        A("v_add_f32 %s, %s, %s" % (v(vS), v(vS), v(vT + 1)))
    def xload(ring):
        A("buffer_load_dwordx4 %s, %s, s[4:7], s%d offen" % (v(X + ring * 8, 4), v(vXo), sXk0))
        A("buffer_load_dwordx4 %s, %s, s[4:7], s%d offen" % (v(X + ring * 8 + 4, 4), v(vXo), sXk1))
    A("s_mov_b32 s%d, 0" % sXk0)
    A("s_mov_b32 s%d, 20480" % sXk1)
    for r_ in range(4):
        xload(r_)
        A("s_add_u32 s%d, s%d, 64" % (sXk0, sXk0))
        A("s_add_u32 s%d, s%d, 64" % (sXk1, sXk1))
    A("s_nop 1")
    for sh in (1, 2, 4, 8):
        A("v_add_f32_dpp %s, %s, %s row_shr:%d row_mask:0xf bank_mask:0xf bound_ctrl:0" % (v(vS), v(vS), v(vS), sh))
        A("s_nop 1")
    A("v_add_f32_dpp %s, %s, %s row_bcast:15 row_mask:0xa bank_mask:0xf" % (v(vS), v(vS), v(vS)))
    A("v_cvt_pk_bf16_f32 %s, %s, %s" % (v(vS), v(vS), v(vS)))
    A("v_lshlrev_b32 %s, 16, %s" % (v(vS), v(vS)))
    A("v_mul_f32 %s, s%d, %s" % (v(vS), sLog2e, v(vS)))
    A("v_exp_f32 %s, -%s" % (v(vS), v(vS)))
    A("s_nop 0")
    A("v_add_f32 %s, 1.0, %s" % (v(vS), v(vS)))
    A("v_rcp_f32 %s, %s" % (v(vS), v(vS)))
    A("s_nop 0")
    A("v_cvt_pk_bf16_f32 %s, %s, %s" % (v(vS), v(vS), v(vS)))
    A("v_lshlrev_b32 %s, 16, %s" % (v(vS), v(vS)))
    A("v_lshlrev_b32 %s, 2, %s" % (v(vGr), v(vGr)))
    A("s_mov_b32 s%d, 0x80000000" % sM0); A("s_mov_b32 s%d, 0x80000000" % (sM0 + 1))
    A("s_mov_b32 s%d, %d" % (sT0, G_OFF))
    A("s_mov_b64 exec, s[%d:%d]" % (sM0, sM0 + 1))
    A("buffer_store_dword %s, %s, s[12:15], s%d offen" % (v(vS), v(vGr), sT0))
    A("s_mov_b64 exec, -1")
    for k in range(64): A("v_mov_b32 %s, 0" % v(acc + k))
    A("s_waitcnt vmcnt(0)")
    A("s_barrier")
    def trread(T, t):
        A("ds_read_b64_tr_b16 %s, %s offset:%d" % (v(WF + T * 4, 2), v(vTR + T), 8192 * t))
        A("ds_read_b64_tr_b16 %s, %s offset:%d" % (v(WF + T * 4 + 2, 2), v(vTR + T), 8192 * t + 1024))
    for T in range(8): trread(T, 0)
    A("s_mov_b32 s%d, 0" % sSt)
    A("s_mov_b32 s%d, 0" % sCnt)
    A("s_mov_b32 s%d, 4" % sH)
    def mfma(T, st, ring):
        xr = v(X + ring * 8 + st * 4, 4); wf = v(WF + T * 4, 4); c = v(ACC(T, st), 4)
        if T < 3: A("v_mfma_f32_16x16x32_bf16 %s, %s, %s, %s" % (c, wf, xr, c))
        else:     A("v_mfma_f32_16x16x32_bf16 %s, %s, %s, %s" % (c, xr, wf, c))
    def xnext(ring):
        A("s_cmp_lt_u32 s%d, 20" % sH)
        A("s_cselect_b32 s%d, s%d, 0x40000000" % (sT0, sXk0))
        A("s_cselect_b32 s%d, s%d, 0x40000000" % (sT1, sXk1))
        A("buffer_load_dwordx4 %s, %s, s[4:7], s%d offen" % (v(X + ring * 8, 4), v(vXo), sT0))
        A("buffer_load_dwordx4 %s, %s, s[4:7], s%d offen" % (v(X + ring * 8 + 4, 4), v(vXo), sT1))
        A("s_add_u32 s%d, s%d, 64" % (sXk0, sXk0))
        A("s_add_u32 s%d, s%d, 64" % (sXk1, sXk1))
        A("s_add_u32 s%d, s%d, 1" % (sH, sH))
    A.label("L_g_loop")
    for cc in range(2):
        A("s_waitcnt vmcnt(14)")
        for T in range(8):
            A("s_waitcnt lgkmcnt(14)")
            mfma(T, 0, 2 * cc); mfma(T, 1, 2 * cc)
            trread(T, 1)
        xnext(2 * cc)
        A("s_waitcnt vmcnt(10)")
        A("s_add_u32 s%d, s%d, 16384" % (sNx, sSt))
        A("s_cmp_eq_u32 s%d, 49152" % sNx)
        A("s_cselect_b32 s%d, 0, s%d" % (sNx, sNx))
        A("s_sub_u32 s%d, s%d, s%d" % (sDl, sNx, sSt))
        A("s_waitcnt lgkmcnt(14)")
        mfma(0, 0, 2 * cc + 1); mfma(0, 1, 2 * cc + 1)
        for T in range(4): A("v_add_u32 %s, s%d, %s" % (v(vTR + T), sDl, v(vTR + T)))
        A("s_waitcnt lgkmcnt(12)")
        mfma(1, 0, 2 * cc + 1); mfma(1, 1, 2 * cc + 1)
        for T in range(4, 8): A("v_add_u32 %s, s%d, %s" % (v(vTR + T), sDl, v(vTR + T)))
        A("s_waitcnt lgkmcnt(0)")
        A("s_barrier")
        trread(0, 0); trread(1, 0)
        dma("s%d" % sSt)
        A("s_mov_b32 s%d, s%d" % (sSt, sNx))
        for T in range(2, 8):
            mfma(T, 0, 2 * cc + 1); mfma(T, 1, 2 * cc + 1)
            trread(T, 0)
        xnext(2 * cc + 1)
    A("s_add_u32 s%d, s%d, 1" % (sCnt, sCnt))
    A("s_cmp_lt_u32 s%d, 5" % sCnt)
    A("s_cbranch_scc1 L_g_loop")

    vFl = vD0
    A("s_lshl_b32 s%d, s%d, 2" % (sT0, sHP))
    A("v_mov_b32 %s, s%d" % (v(vD1), sT0))
    A("global_load_dword %s, %s, s[32:33] sc1" % (v(vFl), v(vD1)))
    A("s_mov_b32 s%d, 0xffff0000" % sT1)
    vOne, vThr = vTR, vTR + 1
    A("v_cmp_gt_u32 vcc, 8, %s" % v(vI))
    A("v_mov_b32 %s, 0xff800000" % v(vT))
    A("s_mov_b64 s[%d:%d], vcc" % (sM1, sM1 + 1))
    A("v_cndmask_b32 %s, 0, 1.0, vcc" % v(vOne))
    A("v_cndmask_b32 %s, %s, 0, vcc" % (v(vThr), v(vT)))
    A("s_nop 4")
    P = WF
    def phi4(src, dst, mixed=False):
        A("v_cvt_pk_bf16_f32 %s, %s, %s" % (v(vT), v(src), v(src + 1)))
        A("v_cvt_pk_bf16_f32 %s, %s, %s" % (v(vT + 1), v(src + 2), v(src + 3)))
        A("v_lshlrev_b32 %s, 16, %s" % (v(src), v(vT)))
        A("v_and_b32 %s, s%d, %s" % (v(src + 1), sT1, v(vT)))
        A("v_lshlrev_b32 %s, 16, %s" % (v(src + 2), v(vT + 1)))
        A("v_and_b32 %s, s%d, %s" % (v(src + 3), sT1, v(vT + 1)))
        for k in range(4): A("v_mul_f32 %s, s%d, %s" % (v(vT + k), sLog2e, v(src + k)))
        for k in range(4): A("v_exp_f32 %s, %s" % (v(vT + k), v(vT + k)))
        for k in range(4):
            if mixed: A("v_add_f32 %s, %s, %s" % (v(vT + 4 + k), v(vOne), v(src + k)))
            else: A("v_add_f32 %s, 1.0, %s" % (v(vT + 4 + k), v(src + k)))
        for k in range(4): A("v_add_f32 %s, s%d, %s" % (v(vT + k), sEps, v(vT + k)))
        thr = v(vThr) if mixed else "0"
        A("v_cmp_lt_f32 vcc, %s, %s" % (thr, v(src)))
        A("v_cmp_lt_f32 s[%d:%d], %s, %s" % (sM0, sM0 + 1, thr, v(src + 1)))
        A("v_cmp_lt_f32 s[%d:%d], %s, %s" % (sT2, sT2 + 1, thr, v(src + 2)))
        A("v_cndmask_b32 %s, %s, %s, vcc" % (v(vT), v(vT), v(vT + 4)))
        A("v_cmp_lt_f32 vcc, %s, %s" % (thr, v(src + 3)))
        A("v_cndmask_b32 %s, %s, %s, s[%d:%d]" % (v(vT + 1), v(vT + 1), v(vT + 5), sM0, sM0 + 1))
        A("v_cndmask_b32 %s, %s, %s, s[%d:%d]" % (v(vT + 2), v(vT + 2), v(vT + 6), sT2, sT2 + 1))
        A("v_cndmask_b32 %s, %s, %s, vcc" % (v(vT + 3), v(vT + 3), v(vT + 7)))
        A("v_cvt_pk_bf16_f32 %s, %s, %s" % (v(dst), v(vT), v(vT + 1)))
        A("v_cvt_pk_bf16_f32 %s, %s, %s" % (v(dst + 1), v(vT + 2), v(vT + 3)))
    A("s_waitcnt lgkmcnt(0)")
    for k, T in enumerate((3, 4, 5)):
        for st in range(2):
            phi4(ACC(T, st), P + k * 4 + st * 2, mixed=(T == 5))
    for k, T in ((3, 6), (4, 7)):
        for st in range(2):
            A("v_cvt_pk_bf16_f32 %s, %s, %s" % (v(P + k * 4 + st * 2), v(ACC(T, st)), v(ACC(T, st) + 1)))
            A("v_cvt_pk_bf16_f32 %s, %s, %s" % (v(P + k * 4 + st * 2 + 1), v(ACC(T, st) + 2), v(ACC(T, st) + 3)))
    A("v_mov_b32 %s, 0x3f803f80" % v(vT))
    for k in range(4):
        A("v_cndmask_b32 %s, %s, %s, s[%d:%d]" % (v(P + 20 + k), v(P + 8 + k), v(vT), sM1, sM1 + 1))
    A("s_nop 1")
    T0k, T1k, T2m, T3v, T4v, T2o = P, P + 4, P + 8, P + 12, P + 16, P + 20
    K = X
    A("s_waitcnt vmcnt(0)")
    pairs = [(T0k, T3v), (T2m, T3v), (T0k, T2o), (T2m, T2o), (T1k, T4v), (T2m, T4v), (T1k, T2o)]
    for k, (a_, b_) in enumerate(pairs):
        A("v_mfma_f32_16x16x32_bf16 %s, %s, %s, 0" % (v(K + k * 4, 4), v(a_, 4), v(b_, 4)))
    A("v_cmp_eq_u32 s[%d:%d], 1, %s" % (sM0, sM0 + 1, v(vG)))
    A("v_cmp_eq_u32 vcc, 1, %s" % v(vI))
    A("v_cmp_le_u32 s[%d:%d], 12, %s" % (sT2, sT2 + 1, v(vI)))
    A("s_barrier")
    A("s_or_b64 s[%d:%d], vcc, s[%d:%d]" % (sT2, sT2 + 1, sT2, sT2 + 1))
    A("s_nop 7")
    for k in range(4):
        A("v_cndmask_b32 %s, %s, %s, s[%d:%d]" % (v(K + 4 + k), v(K + 4 + k), v(K + 20 + k), sM0, sM0 + 1))
        A("v_cndmask_b32 %s, %s, %s, s[%d:%d]" % (v(K + 8 + k), v(K + 8 + k), v(K + 24 + k), sT2, sT2 + 1))
    A("s_mul_i32 s%d, s%d, 5120" % (sT0, sW))
    A("v_lshlrev_b32 %s, 4, %s" % (v(vT), v(vL)))
    A("v_add_u32 %s, s%d, %s" % (v(vT), sT0, v(vT)))
    for m, src in enumerate((K, K + 16, K + 4, K + 8, K + 12)):
        A("ds_write_b128 %s, %s offset:%d" % (v(vT), v(src, 4), m * 1024))
    A("v_lshlrev_b32 %s, 2, v0" % v(vT + 1))
    A("s_waitcnt lgkmcnt(0)")
    A("s_barrier")
    Rd = K
    for m in range(5):
        A("ds_read2st64_b32 %s, %s offset0:%d offset1:%d" % (v(Rd + m * 4, 2), v(vT + 1), m * 4, m * 4 + 20))
        A("ds_read2st64_b32 %s, %s offset0:%d offset1:%d" % (v(Rd + m * 4 + 2, 2), v(vT + 1), m * 4 + 40, m * 4 + 60))
    A.label("L_g_poll")
    A("v_readfirstlane_b32 s%d, %s" % (sT0, v(vFl)))
    A("s_cmp_lg_u32 s%d, 0" % sT0)
    A("s_cbranch_scc1 L_g_polled")
    A("s_sleep 2")
    A("global_load_dword %s, %s, s[32:33] sc1" % (v(vFl), v(vD1)))
    A("s_waitcnt vmcnt(0)")
    A("s_branch L_g_poll")
    A.label("L_g_polled")
    A("s_waitcnt lgkmcnt(0)")
    for m in range(5):
        A("v_add_f32 %s, %s, %s" % (v(Rd + m * 4), v(Rd + m * 4), v(Rd + m * 4 + 1)))
        A("v_add_f32 %s, %s, %s" % (v(Rd + m * 4 + 2), v(Rd + m * 4 + 2), v(Rd + m * 4 + 3)))
        A("v_add_f32 %s, %s, %s" % (v(Rd + m * 4), v(Rd + m * 4), v(Rd + m * 4 + 2)))
    A("s_mul_i32 s%d, s%d, 5120" % (sT0, sHP))
    A("buffer_atomic_add_f32 %s, %s, s[12:15], s%d offen" % (v(Rd), v(vT + 1), sT0))
    A("buffer_atomic_add_f32 %s, %s, s[12:15], s%d offen offset:1024" % (v(Rd + 4), v(vT + 1), sT0))
    A("s_mov_b32 s%d, 0xff" % sM0); A("s_mov_b32 s%d, -1" % (sM0 + 1))
    A("s_mov_b64 exec, s[%d:%d]" % (sM0, sM0 + 1))
    A("buffer_atomic_add_f32 %s, %s, s[12:15], s%d offen offset:3072" % (v(Rd + 12), v(vT + 1), sT0))
    A("s_cmp_ge_u32 s%d, 2" % sW)
    A("s_cbranch_scc1 L_g_at2")
    A("s_add_u32 s%d, s%d, 4096" % (sT2, sT0))
    A("buffer_atomic_add_f32 %s, %s, s[12:15], s%d offen" % (v(Rd + 16), v(vT + 1), sT2))
    A("s_mov_b64 exec, -1")
    A("buffer_atomic_add_f32 %s, %s, s[12:15], s%d offen offset:2048" % (v(Rd + 8), v(vT + 1), sT0))
    A.label("L_g_at2")
    A("s_mov_b64 exec, -1")
    Rq = P
    for st in range(2):
        for m in range(3):
            phi4(ACC(m, st), Rq + st * 8 + m * 2)
    A("s_lshl_b32 s%d, s%d, 3" % (sT0, sRB))
    A("s_lshl_b32 s%d, s%d, 1" % (sT2, sW))
    A("s_add_u32 s%d, s%d, s%d" % (sT0, sT0, sT2))
    A("s_lshl_b32 s%d, s%d, 3" % (sT0, sT0))
    A("s_lshr_b32 s%d, s%d, 1" % (sT2, sHP))
    A("s_add_u32 s%d, s%d, s%d" % (sT0, sT0, sT2))
    A("s_mul_i32 s%d, s%d, 3072" % (sT0, sT0))
    A("s_add_u32 s%d, s%d, %d" % (sT0, sT0, PQ_OFF))
    A("s_add_u32 s%d, s%d, %d" % (sT2, sT0, 8 * 3072))
    A("v_lshlrev_b32 %s, 4, %s" % (v(vT), v(vL)))
    A("s_and_b32 s%d, s%d, 1" % (sT3, sHP))
    A("s_cmp_eq_u32 s%d, 1" % sT3)
    A("s_cbranch_scc1 L_g_pq1")
    for st, so in ((0, sT0), (1, sT2)):
        A("buffer_store_dwordx4 %s, %s, s[12:15], s%d offen" % (v(Rq + st * 8, 4), v(vT), so))
        A("buffer_store_dwordx2 %s, %s, s[12:15], s%d offen offset:1024" % (v(Rq + st * 8 + 4, 2), v(vT), so))
    A("s_endpgm")
    A.label("L_g_pq1")
    for st, so in ((0, sT0), (1, sT2)):
        A("buffer_store_dwordx2 %s, %s, s[12:15], s%d offen offset:1032" % (v(Rq + st * 8, 2), v(vT), so))
        A("buffer_store_dwordx4 %s, %s, s[12:15], s%d offen offset:2048" % (v(Rq + st * 8 + 2, 4), v(vT), so))
    A("s_endpgm")
    return R.hi
```

```python
from asmlib import *
from layout import *
import math
L2_LDS = 73728
A_LDS = 61440

def gen_l2(A):
    sX, sY, sRB, sNB, sW = 22, 23, 24, 25, 26
    sT0, sT1, sT2, sT3 = 28, 29, 30, 31
    sM0, sM1 = 32, 34
    sMask, sEps = 36, 37
    R = RegAlloc(1, 256)
    vL, vI, vG = R.alloc(), R.alloc(), R.alloc()
    vL16 = R.alloc()
    vT = R.alloc(12, 2)
    vGv, vOmg = R.alloc(), R.alloc()
    PQ = R.alloc(48, 4)
    KVF = R.alloc(128, 4)
    O = R.alloc(40, 4)
    N = R.alloc(16, 4)
    vKA = N
    def ACC(st, nt): return (st * 10 + nt) * 4
    def WOF(ks, nt): return 80 + (ks * 10 + nt) * 4

    A.label("attn_out_kernel")
    A("s_cmp_ge_u32 s2, 256")
    A("s_cbranch_scc1 L_2_done")
    A("s_load_dwordx2 s[4:5], s[0:1], 104")
    A("s_load_dwordx2 s[8:9], s[0:1], 120")
    A("s_and_b32 s%d, s2, 7" % sX)
    A("s_lshr_b32 s%d, s2, 3" % sY)
    A("s_lshl_b32 s%d, s%d, 3" % (sRB, sX))
    A("s_and_b32 s%d, s%d, 7" % (sT0, sY))
    A("s_add_u32 s%d, s%d, s%d" % (sRB, sRB, sT0))
    A("s_lshr_b32 s%d, s%d, 3" % (sNB, sY))
    A("v_lshrrev_b32 %s, 6, v0" % v(vT))
    A("v_and_b32 %s, 63, v0" % v(vL))
    A("v_readfirstlane_b32 s%d, %s" % (sW, v(vT)))
    A("v_and_b32 %s, 15, v0" % v(vI))
    A("v_lshrrev_b32 %s, 4, %s" % (v(vG), v(vL)))
    A("v_lshlrev_b32 %s, 4, %s" % (v(vL16), v(vL)))
    A("s_mov_b32 s%d, 0xffff0000" % sMask)
    A("s_mov_b32 s%d, %s" % (sEps, f32bits(1e-6)))
    dqt = {(0, 0): (0, 1, 2, 15), (0, 1): (3, 4, 15, 15), (1, 0): (15, 15, 0, 1), (1, 1): (15, 2, 3, 4)}
    A("v_lshlrev_b32 %s, 3, %s" % (v(vT), v(vG)))
    A("v_and_b32 %s, 3, %s" % (v(vT + 1), v(vI)))
    A("v_cmp_eq_u32 s[%d:%d], 0, %s" % (sM0, sM0 + 1, v(vT + 1)))
    A("v_lshrrev_b32 %s, 2, %s" % (v(vT + 1), v(vI)))
    for X in range(2):
        A("v_add_u32 %s, %d, %s" % (v(vT + 2), 8 + 4 * X, v(vT + 1)))
        A("v_cndmask_b32 %s, %d, %s, s[%d:%d]" % (v(vT + 2), X, v(vT + 2), sM0, sM0 + 1))
        for qp in range(2):
            t = dqt[(X, qp)]
            A("s_mov_b32 s%d, 0x%x" % (sT0, t[0] | t[1] << 8 | t[2] << 16 | t[3] << 24))
            A("v_bfe_u32 %s, s%d, %s, 8" % (v(vT + 3), sT0, v(vT)))
            A("v_cmp_gt_u32 vcc, 4, %s" % v(vT + 3))
            A("v_cmp_eq_u32 s[%d:%d], 15, %s" % (sM1, sM1 + 1, v(vT + 3)))
            A("v_lshlrev_b32 %s, 8, %s" % (v(vT + 4), v(vT + 3)))
            A("v_add_u32 %s, %d, %s" % (v(vT + 5), X * 1024, v(vT + 4)))
            A("v_mov_b32 %s, %d" % (v(vT + 6), 2048 + X * 256))
            A("v_cndmask_b32 %s, %s, %s, vcc" % (v(vT + 5), v(vT + 6), v(vT + 5)))
            A("v_lshl_add_u32 %s, %s, 4, %s" % (v(vT + 5), v(vI), v(vT + 5)))
            A("v_mov_b32 %s, 0x40000000" % v(vT + 7))
            A("v_cndmask_b32 %s, %s, %s, s[%d:%d]" % (v(vKA + X * 4 + qp), v(vT + 5), v(vT + 7), sM1, sM1 + 1))
            A("v_add_u32 %s, 3072, %s" % (v(vT + 5), v(vT + 4)))
            A("v_mov_b32 %s, %d" % (v(vT + 6), 4096 + X * 256))
            A("v_cndmask_b32 %s, %s, %s, vcc" % (v(vT + 5), v(vT + 6), v(vT + 5)))
            A("v_lshl_add_u32 %s, %s, 4, %s" % (v(vT + 5), v(vT + 2), v(vT + 5)))
            A("v_cndmask_b32 %s, %s, %s, s[%d:%d]" % (v(vKA + X * 4 + 2 + qp), v(vT + 5), v(vT + 7), sM1, sM1 + 1))
    A("s_waitcnt lgkmcnt(0)")
    A("s_and_b32 s5, s5, 0xffff"); A("s_mov_b32 s6, 2621440"); A("s_mov_b32 s7, 0x00020000")
    A("s_and_b32 s9, s9, 0xffff"); A("s_mov_b32 s10, %d" % WS_SIZE); A("s_mov_b32 s11, 0x00020000")
    A("s_mul_i32 s%d, s%d, %d" % (sT0, sW, 4 * 5120))
    for j in range(4):
        for X in range(2):
            for t in range(2):
                for qp in range(2):
                    A("buffer_load_dwordx4 %s, %s, s[8:11], s%d offen" % (v(KVF + ((j * 2 + X) * 2 + t) * 8 + qp * 4, 4), v(vKA + X * 4 + t * 2 + qp), sT0))
        if j < 3: A("s_add_u32 s%d, s%d, 5120" % (sT0, sT0))
    A("s_lshl_b32 s%d, s%d, 4" % (sT0, sRB))
    A("s_lshl_b32 s%d, s%d, 1" % (sT1, sW))
    A("s_add_u32 s%d, s%d, s%d" % (sT0, sT0, sT1))
    A("s_mul_i32 s%d, s%d, 3072" % (sT0, sT0))
    A("s_add_u32 s%d, s%d, %d" % (sT0, sT0, PQ_OFF))
    for st in range(2):
        for c in range(6):
            if c == 4: A("s_add_u32 s%d, s%d, 4096" % (sT1, sT0))
            A("buffer_load_dwordx4 %s, %s, s[8:11], s%d offen offset:%d" % (v(PQ + st * 24 + c * 4, 4), v(vL16), sT0 if c < 4 else sT1, (c % 4) * 1024))
        if st == 0: A("s_add_u32 s%d, s%d, %d" % (sT0, sT0, 8 * 3072))
    A("s_lshl_b32 s%d, s%d, 5" % (sT0, sRB))
    A("s_and_b32 s%d, s%d, 1" % (sT1, sW))
    A("s_lshl_b32 s%d, s%d, 4" % (sT1, sT1))
    A("s_add_u32 s%d, s%d, s%d" % (sT0, sT0, sT1))
    A("v_add_u32 %s, s%d, %s" % (v(vT + 8), sT0, v(vI)))
    A("v_lshlrev_b32 %s, 2, %s" % (v(vT), v(vT + 8)))
    A("s_mov_b32 s%d, %d" % (sT0, G_OFF))
    A("buffer_load_dword %s, %s, s[8:11], s%d offen" % (v(vGv), v(vT), sT0))
    A("s_mul_i32 s%d, s%d, 192" % (sT0, sW))
    A("v_add_u32 %s, s%d, %s" % (v(vT), sT0, v(vL)))
    A("s_mul_i32 s%d, s%d, %d" % (sT1, sNB, 160 * 4096))
    A("s_lshl_b32 s%d, s%d, 6" % (sT2, sRB))
    A("s_add_u32 s%d, s%d, s%d" % (sT1, sT1, sT2))
    A("s_add_u32 s%d, s%d, %d" % (sT1, sT1, AT_OFF))
    A("s_mul_i32 s%d, s%d, 3072" % (sT2, sW))
    for q in range(3):
        A("v_add_u32 %s, %d, %s" % (v(vT + 1), q * 64, v(vT)))
        A("v_lshrrev_b32 %s, 2, %s" % (v(vT + 2), v(vT + 1)))
        A("v_lshlrev_b32 %s, 12, %s" % (v(vT + 2), v(vT + 2)))
        A("v_and_b32 %s, 3, %s" % (v(vT + 3), v(vT + 1)))
        A("v_lshl_add_u32 %s, %s, 4, %s" % (v(vT + 2), v(vT + 3), v(vT + 2)))
        A("v_cmp_gt_u32 vcc, 640, %s" % v(vT + 1))
        A("v_mov_b32 %s, 0x40000000" % v(vT + 3))
        A("s_add_u32 m0, s%d, %d" % (sT2, A_LDS + q * 1024))
        A("v_cndmask_b32 %s, %s, %s, vcc" % (v(vT + 2), v(vT + 3), v(vT + 2)))
        A("buffer_load_dwordx4 %s, s[8:11], s%d offen lds" % (v(vT + 2), sT1))
    A("s_mul_i32 s%d, s%d, 200" % (sT0, sNB))
    A("s_mul_i32 s%d, s%d, 5" % (sT1, sW))
    A("s_add_u32 s%d, s%d, s%d" % (sT0, sT0, sT1))
    A("s_lshl_b32 s%d, s%d, 10" % (sT0, sT0))
    A("s_add_u32 s%d, s%d, %d" % (sT3, sT0, WOF_OFF))
    for ks in range(4):
        A("s_mov_b32 s%d, s%d" % (sT0, sT3))
        for nt in range(10):
            A("buffer_load_dwordx4 %s, %s, s[8:11], s%d offen offset:%d" % (a(WOF(ks, nt), 4), v(vL16), sT0, ks * 1024))
            if nt < 9: A("s_add_u32 s%d, s%d, 20480" % (sT0, sT0))
    for k in range(80): A("v_accvgpr_write_b32 a%d, 0" % k)
    A("s_waitcnt vmcnt(56)")
    for f in range(16):
        for k in range(4):
            A("v_cvt_pk_bf16_f32 %s, %s, %s" % (v(KVF + f * 4 + k), v(KVF + f * 8 + 2 * k), v(KVF + f * 8 + 2 * k + 1)))
    W4 = KVF + 64
    A("s_mov_b32 s%d, s%d" % (sT0, sT3))
    A("s_add_u32 s%d, s%d, 4096" % (sT0, sT0))
    for nt in range(10):
        A("buffer_load_dwordx4 %s, %s, s[8:11], s%d offen" % (v(W4 + nt * 4, 4), v(vL16), sT0))
        if nt < 9: A("s_add_u32 s%d, s%d, 20480" % (sT0, sT0))
    A("s_waitcnt vmcnt(54)")
    def num_mfma(h, st, buf):
        j, X = h >> 1, h & 1
        b = PQ + st * 24 + 6 * j + 2 * X
        for t in range(2):
            A("v_mfma_f32_16x16x32_bf16 %s, %s, %s, 0" % (v(N + buf * 8 + t * 4, 4), v(KVF + (h * 2 + t) * 4, 4), v(b, 4)))
    Of = KVF + 104
    def norm(h, st, buf):
        n = N + buf * 8
        o = Of + st * 10 + (h & 1) * 5
        A("v_cvt_pk_bf16_f32 %s, %s, %s" % (v(vT), v(n + 4), v(n + 5)))
        A("v_cvt_pk_bf16_f32 %s, %s, %s" % (v(vT + 1), v(n), v(n + 1)))
        A("v_cvt_pk_bf16_f32 %s, %s, %s" % (v(vT + 2), v(n + 2), v(n + 3)))
        A("v_and_b32 %s, s%d, %s" % (v(vT + 3), sMask, v(vT)))
        A("v_add_f32 %s, s%d, %s" % (v(vT + 3), sEps, v(vT + 3)))
        A("v_cvt_pk_bf16_f32 %s, %s, %s" % (v(vT + 3), v(vT + 3), v(vT + 3)))
        A("v_lshlrev_b32 %s, 16, %s" % (v(vT + 3), v(vT + 3)))
        A("v_rcp_f32 %s, %s" % (v(vT + 3), v(vT + 3)))
        A("v_lshlrev_b32 %s, 16, %s" % (v(o), v(vT + 1)))
        A("v_and_b32 %s, s%d, %s" % (v(o + 1), sMask, v(vT + 1)))
        A("v_lshlrev_b32 %s, 16, %s" % (v(o + 2), v(vT + 2)))
        A("v_and_b32 %s, s%d, %s" % (v(o + 3), sMask, v(vT + 2)))
        A("v_lshlrev_b32 %s, 16, %s" % (v(o + 4), v(vT)))
        for k in range(5): A("v_mul_f32 %s, %s, %s" % (v(o + k), v(o + k), v(vT + 3)))
        if h & 1:
            j = h >> 1
            for k in range(5):
                A("v_cvt_pk_bf16_f32 %s, %s, %s" % (v(O + st * 20 + j * 5 + k), v(Of + st * 10 + 2 * k), v(Of + st * 10 + 2 * k + 1)))
    def gemm2(ks):
        for nt in range(10):
            wf = a(WOF(ks, nt), 4) if ks < 4 else v(W4 + nt * 4, 4)
            for st in range(2):
                A("v_mfma_f32_16x16x32_bf16 %s, %s, %s, %s" % (a(ACC(st, nt), 4), wf, v(O + (st * 5 + ks) * 4, 4), a(ACC(st, nt), 4)))
    seq = [(h, st) for h in range(8) for st in range(2)]
    num_mfma(0, 0, 0)
    num_mfma(0, 1, 1)
    A("s_nop 5")
    ready_after = {0: 0, 1: 1, 2: 2, 3: 3, 4: 3}
    wait_for = {0: 40, 1: 30, 2: 20, 3: 10, 4: 0}
    for idx, (h, st) in enumerate(seq):
        norm(h, st, idx & 1)
        if idx + 2 < len(seq):
            h2, st2 = seq[idx + 2]
            num_mfma(h2, st2, idx & 1)
        if (h & 1) and st == 1:
            j = h >> 1
            for ks in range(5):
                if ready_after[ks] == j:
                    A("s_waitcnt vmcnt(%d)" % wait_for[ks])
                    gemm2(ks)
    A("s_nop 7")
    A("s_nop 3")
    for wv in range(4):
        A("s_cmp_eq_u32 s%d, %d" % (sW, wv))
        A("s_cbranch_scc0 L_2_red%d" % (wv + 1))
        for ow in range(4):
            if ow == wv: continue
            slot = (wv - ow - 1) & 3
            st, nb0 = ow & 1, (ow >> 1) * 5
            for k in range(5):
                A("ds_write_b128 %s, %s offset:%d" % (v(vL16), a(ACC(st, nb0 + k), 4), ((ow * 3 + slot) * 5 + k) * 1024))
        st, nb0 = wv & 1, (wv >> 1) * 5
        for k in range(5):
            for e in range(4):
                A("v_accvgpr_read_b32 %s, a%d" % (v(O + k * 4 + e), ACC(st, nb0 + k) + e))
        A("s_branch L_2_red_done")
        A.label("L_2_red%d" % (wv + 1))
    A.label("L_2_red_done")
    A("s_waitcnt vmcnt(0) lgkmcnt(0)")
    A("s_barrier")
    A("s_mul_i32 s%d, s%d, 15360" % (sT0, sW))
    A("v_add_u32 %s, s%d, %s" % (v(vT), sT0, v(vL16)))
    RD = KVF
    for sl in range(3):
        for k in range(5):
            A("ds_read_b128 %s, %s offset:%d" % (v(RD + (sl * 5 + k) * 4, 4), v(vT), (sl * 5 + k) * 1024))
    A("v_lshrrev_b32 %s, 2, %s" % (v(vT + 1), v(vI)))
    A("v_lshl_add_u32 %s, %s, 3, %s" % (v(vT + 1), v(vG), v(vT + 1)))
    A("v_lshlrev_b32 %s, 6, %s" % (v(vT + 1), v(vT + 1)))
    A("v_and_b32 %s, 3, %s" % (v(vT + 2), v(vI)))
    A("v_lshl_add_u32 %s, %s, 3, %s" % (v(vT + 1), v(vT + 2), v(vT + 1)))
    A("s_and_b32 s%d, s%d, 1" % (sT0, sW))
    A("s_lshl_b32 s%d, s%d, 5" % (sT0, sT0))
    A("s_add_u32 s%d, s%d, %d" % (sT0, sT0, A_LDS))
    A("v_add_u32 %s, s%d, %s" % (v(vT + 1), sT0, v(vT + 1)))
    AV = PQ
    A("s_cmp_ge_u32 s%d, 2" % sW)
    A("s_cbranch_scc1 L_2_a1")
    for k in range(5):
        ntl = k
        A("ds_read_b64_tr_b16 %s, %s offset:%d" % (v(AV + 2 * k, 2), v(vT + 1), (32 * (ntl >> 1) + 4 * (ntl & 1)) * 64))
    A("s_branch L_2_a2")
    A.label("L_2_a1")
    for k in range(5):
        ntl = 5 + k
        A("ds_read_b64_tr_b16 %s, %s offset:%d" % (v(AV + 2 * k, 2), v(vT + 1), (32 * (ntl >> 1) + 4 * (ntl & 1)) * 64))
    A.label("L_2_a2")
    A("v_sub_f32 %s, 1.0, %s" % (v(vOmg), v(vGv)))
    A("v_cvt_pk_bf16_f32 %s, %s, %s" % (v(vOmg), v(vOmg), v(vOmg)))
    A("v_lshlrev_b32 %s, 16, %s" % (v(vOmg), v(vOmg)))
    A("s_movk_i32 s%d, 1280" % sT0)
    A("v_lshlrev_b32 %s, 4, %s" % (v(vT + 9), v(vG)))
    A("v_mad_u32_u24 %s, %s, s%d, %s" % (v(vT + 9), v(vT + 8), sT0, v(vT + 9)))
    A("s_mul_i32 s%d, s%d, 320" % (sT1, sNB))
    A("s_waitcnt lgkmcnt(0)")
    OUT = PQ + 12
    GA = PQ + 24
    def rnd2(x):
        A("v_cvt_pk_bf16_f32 %s, %s, %s" % (v(vT + 2), v(x), v(x + 1)))
        A("v_lshlrev_b32 %s, 16, %s" % (v(x), v(vT + 2)))
        A("v_and_b32 %s, s%d, %s" % (v(x + 1), sMask, v(vT + 2)))
    for k in range(5):
        b = O + k * 4
        for sl in range(3):
            for h in range(2):
                A("v_pk_add_f32 %s, %s, %s" % (v(b + 2 * h, 2), v(b + 2 * h, 2), v(RD + (sl * 5 + k) * 4 + 2 * h, 2)))
        for h in range(2):
            A("v_lshlrev_b32 %s, 16, %s" % (v(GA + 2 * h), v(AV + 2 * k + h)))
            A("v_and_b32 %s, s%d, %s" % (v(GA + 2 * h + 1), sMask, v(AV + 2 * k + h)))
        for e in range(4): A("v_mul_f32 %s, %s, %s" % (v(GA + e), v(GA + e), v(vGv)))
        rnd2(GA); rnd2(GA + 2)
        rnd2(b); rnd2(b + 2)
        for e in range(4): A("v_mul_f32 %s, %s, %s" % (v(b + e), v(b + e), v(vOmg)))
        rnd2(b); rnd2(b + 2)
        for h in range(2):
            A("v_pk_add_f32 %s, %s, %s" % (v(b + 2 * h, 2), v(b + 2 * h, 2), v(GA + 2 * h, 2)))
        A("v_cvt_pk_bf16_f32 %s, %s, %s" % (v(OUT + 2 * k), v(b), v(b + 1)))
        A("v_cvt_pk_bf16_f32 %s, %s, %s" % (v(OUT + 2 * k + 1), v(b + 2), v(b + 3)))
    A("s_cmp_ge_u32 s%d, 2" % sW)
    A("s_cbranch_scc1 L_2_s1")
    A("buffer_store_dwordx4 %s, %s, s[4:7], s%d offen" % (v(OUT, 4), v(vT + 9), sT1))
    A("buffer_store_dwordx4 %s, %s, s[4:7], s%d offen offset:64" % (v(OUT + 4, 4), v(vT + 9), sT1))
    A("buffer_store_dwordx2 %s, %s, s[4:7], s%d offen offset:128" % (v(OUT + 8, 2), v(vT + 9), sT1))
    A("s_endpgm")
    A.label("L_2_s1")
    A("buffer_store_dwordx2 %s, %s, s[4:7], s%d offen offset:136" % (v(OUT, 2), v(vT + 9), sT1))
    A("buffer_store_dwordx4 %s, %s, s[4:7], s%d offen offset:192" % (v(OUT + 2, 4), v(vT + 9), sT1))
    A("buffer_store_dwordx4 %s, %s, s[4:7], s%d offen offset:256" % (v(OUT + 6, 4), v(vT + 9), sT1))
    A.label("L_2_done")
    A("s_endpgm")
    return R.hi
```

```python
KV_OFF  = 0x0
G_OFF   = 0x20000
WOF_OFF = 0x40000
PQ_OFF  = 0x200000
AT_OFF  = 0x600000
WS_SIZE = 0x900000
N_GEMM = 256
N_CONV = 320
L1_LDS = 51200
QS = [
    (0, 1, 2, 3), (3, 4, 5, 6), (6, 7, 8, 9),
    (10, 11, 12, 13), (15, 16, 17, 18), (14, 19, 24, 29), (20, 21, 22, 23), (25, 26, 27, 28)]
```

```python
import sys
from asmlib import *
from layout import *
from gemm_role import gen_gemm
from conv_role import gen_conv
from l2_kernel import gen_l2, L2_LDS
K1 = "gated_mix__ssm_conv_s4__linear_attn_block__prompt_kernel"
K2 = "attn_out_kernel"
hdr = open("gated_mix__ssm_conv_s4__linear_attn_block__prompt.s.ref").read().split("; Override launch")[0]
A = Asm()
A.raw(hdr.rstrip())
A.raw("; @launch kernel=%s grid=(%d,1,1) block=(256,1,1) lds=%d" % (K1, N_GEMM + N_CONV, L1_LDS))
A.raw("; @launch kernel=%s grid=(256,1,1) block=(256,1,1) lds=%d" % (K2, L2_LDS))
A.raw('.amdgcn_target "amdgcn-amd-amdhsa--gfx950"')
A.raw(".text")
A.raw(".globl %s\n.p2align 8\n.type %s,@function" % (K1, K1))
A.label(K1)
A("s_cmp_ge_u32 s2, %d" % (N_GEMM + N_CONV))
A("s_cbranch_scc1 L_1_done")
A("s_cmp_ge_u32 s2, %d" % N_GEMM)
A("s_cbranch_scc1 L_conv")
h1 = gen_gemm(A)
h2 = gen_conv(A)
A.label("L_1_done")
A("s_endpgm")
A.raw(".globl %s\n.p2align 8\n.type %s,@function" % (K2, K2))
h3 = gen_l2(A)
nv1 = max(h1, h2)
print("vgprs", h1, h2, h3, file=sys.stderr)
def desc(name, nv, acc, ns):
    A.raw(""".p2align 6
.amdhsa_kernel %s
  .amdhsa_next_free_vgpr %d
  .amdhsa_next_free_sgpr %d
  .amdhsa_accum_offset %d
  .amdhsa_group_segment_fixed_size 0
  .amdhsa_kernarg_size 128
  .amdhsa_user_sgpr_count 2
  .amdhsa_user_sgpr_kernarg_segment_ptr 1
  .amdhsa_system_sgpr_workgroup_id_x 1
.end_amdhsa_kernel""" % (name, nv, ns, acc))
A.raw('.section .rodata,"a"')
desc(K1, nv1, (nv1 + 3) // 4 * 4, 64)
desc(K2, 256 + 240, 256, 64)
out = sys.argv[1] if len(sys.argv) > 1 else "gated_mix__ssm_conv_s4__linear_attn_block__prompt.s"
open(out, "w").write(A.text())
```
